```python
import torch

def _softmax(x, axis=-1):
    return torch.softmax(x, dim=axis)

def _gelu(x):
    return torch.nn.functional.gelu(x, approximate='tanh')

def _silu(x):
    return torch.nn.functional.silu(x)

def _sigmoid(x):
    return torch.sigmoid(x)

def _layernorm(x, axis=-1, eps=1e-05):
    m = x.mean(dim=axis, keepdim=True)
    v = x.var(dim=axis, keepdim=True, unbiased=False)
    return (x - m) / torch.sqrt(v + eps)

def _scatter_add(tgt, idx, src, axis=0):
    return tgt.clone().index_add_(axis, idx, src)

def _segment_sum(src, seg, n):
    out = torch.zeros((n,) + src.shape[1:], dtype=src.dtype)
    return out.index_add_(0, seg, src)

def _pad(x, pw):
    flat = tuple((v for pair in reversed(pw) for v in pair))
    return torch.nn.functional.pad(x, flat)
kernel_name = 'interleave_layers__linear_attn_block__memory_aug_recurrent_mem_tr__prompt'

def setup_inputs():

    _w = lambda a: (lambda t: t.to(torch.bfloat16) if t.is_floating_point() else t)(torch.as_tensor(a))

    def _A_setup():
        B, S, D = (1, 2048, 512)
        return {'x': _w((lambda *s: torch.randn(*s, dtype=torch.bfloat16) * 0.05)(B, S, D)), 'wqkv': _w((lambda *s: torch.randn(*s, dtype=torch.bfloat16) * 0.05)(D, 3 * D)), 'wo': _w((lambda *s: torch.randn(*s, dtype=torch.bfloat16) * 0.05)(D, D))}
    _A_in = _A_setup()

    def _B_setup():
        B, S, Dm = (1, 2048, 512)
        H, Dh = (32, 128)
        M, seg = (8, 32)
        seg = min(seg, S)
        S = S // seg * seg
        return {'x': _w((lambda *s: torch.randn(*s, dtype=torch.bfloat16) * 0.05)(B, S, Dm)), 'mem0': _w((lambda *s: torch.randn(*s, dtype=torch.bfloat16) * 0.4)(B, M, Dm)), 'Wq': _w((lambda *s: torch.randn(*s, dtype=torch.bfloat16) * 3.2)(Dm, H, Dh) * Dm ** (-0.5)), 'Wk': _w((lambda *s: torch.randn(*s, dtype=torch.bfloat16) * 3.2)(Dm, H, Dh) * Dm ** (-0.5)), 'Wv': _w((lambda *s: torch.randn(*s, dtype=torch.bfloat16) * 0.4)(Dm, H, Dh) * Dm ** (-0.5)), 'Wo': _w((lambda *s: torch.randn(*s, dtype=torch.bfloat16) * 0.4)(H, Dh, Dm) * (H * Dh) ** (-0.5)), 'seg_len': seg}
    _B_in = _B_setup()
    return {'A_x': _A_in['x'], 'A_wqkv': _A_in['wqkv'], 'A_wo': _A_in['wo'], 'B_x': _B_in['x'], 'B_mem0': _B_in['mem0'], 'B_Wq': _B_in['Wq'], 'B_Wk': _B_in['Wk'], 'B_Wv': _B_in['Wv'], 'B_Wo': _B_in['Wo'], 'B_seg_len': _B_in['seg_len']}

def reference(A_x, A_wqkv, A_wo, B_x, B_mem0, B_Wq, B_Wk, B_Wv, B_Wo, B_seg_len):

    def _A_ref(x, wqkv, wo):
        B, S, D = x.shape
        H = 32
        Dh = D // H
        qkv = (lambda x, *d: x.permute(*d))((x @ wqkv).reshape(B, S, 3, H, Dh), 2, 0, 3, 1, 4)
        q, k, v = (qkv[0], qkv[1], qkv[2])
        phi = lambda t: torch.where(t > 0, t + 1, torch.exp(t)) + 1e-06
        pq, pk = (phi(q), phi(k))
        kv = torch.einsum('bhsd,bhse->bhde', pk, v)
        z = torch.einsum('bhsd->bhd', pk)
        num = torch.einsum('bhqd,bhde->bhqe', pq, kv)
        den = torch.einsum('bhqd,bhd->bhq', pq, z)[..., None] + 1e-06
        o = num / den
        return (lambda x, *d: x.permute(*d))(o, 0, 2, 1, 3).reshape(B, S, D) @ wo

    def _B_ref(x, mem0, Wq, Wk, Wv, Wo, seg_len):
        B, S, Dm = x.shape
        H, Dh = (Wq.shape[1], Wq.shape[2])
        M = mem0.shape[1]
        scale = Dh ** (-0.5)
        n_seg = S // seg_len
        L = M + seg_len
        idx = torch.arange(L)
        mask = (idx[:, None] < M) | (idx[:, None] >= idx[None, :])
        mem = mem0
        outs = []
        for s in range(n_seg):
            xs = x[:, s * seg_len:(s + 1) * seg_len, :].clone()
            h = torch.concatenate([mem, xs], axis=1)
            q = torch.einsum('btd,dhe->bhte', h, Wq)
            k = torch.einsum('btd,dhe->bhte', h, Wk)
            v = torch.einsum('btd,dhe->bhte', h, Wv)
            scores = torch.einsum('bhqe,bhke->bhqk', q, k) * scale
            scores = torch.where(mask[None, None], scores, -1000000000.0)
            p = _softmax(scores, axis=-1)
            o = torch.einsum('bhqk,bhke->bhqe', p, v)
            o = torch.einsum('bhte,hed->btd', o, Wo)
            mem = o[:, :M, :].clone()
            outs.append(o[:, M:, :])
        return torch.concatenate(outs, axis=1)
    x = A_x
    x = x + _A_ref(_layernorm(x, axis=-1), A_wqkv, A_wo)
    x = x + _B_ref(_layernorm(x, axis=-1), B_mem0, B_Wq, B_Wk, B_Wv, B_Wo, B_seg_len)
    x = x + _A_ref(_layernorm(x, axis=-1), A_wqkv, A_wo)
    x = x + _B_ref(_layernorm(x, axis=-1), B_mem0, B_Wq, B_Wk, B_Wv, B_Wo, B_seg_len)
    return x
```

```python
import re

_REG = re.compile(r'^(-|abs\()?([vas])(\d+|\[(\d+):(\d+)\])\)?$')

def regs_of(tok):
    tok = tok.strip()
    if tok in ('vcc', 'vcc_lo', 'vcc_hi'): return {('s', 'vcc')}
    if tok in ('exec', 'exec_lo', 'exec_hi'): return {('s', 'exec')}
    if tok == 'm0': return {('s', 'm0')}
    m = _REG.match(tok)
    if not m: return set()
    k = m.group(2)
    if m.group(4) is not None:
        return {(k, i) for i in range(int(m.group(4)), int(m.group(5)) + 1)}
    return {(k, int(m.group(3)))}

def split_ops(s):
    out, depth, cur = [], 0, ''
    for ch in s:
        if ch in '[(': depth += 1
        if ch in '])': depth -= 1
        if ch == ',' and depth == 0:
            out.append(cur.strip()); cur = ''
        else: cur += ch
    if cur.strip(): out.append(cur.strip())
    return out

TRANS = ('v_exp_f32', 'v_log_f32', 'v_rcp_f32', 'v_rsq_f32', 'v_sqrt_f32', 'v_sin_f32', 'v_cos_f32')

class Ins:
    pass

def decode(line):
    line = line.split(';')[0].strip()
    parts = line.split(None, 1)
    mn = parts[0]
    rest = parts[1] if len(parts) > 1 else ''
    ops = split_ops(rest)
    mods = ''
    if ops:
        last = ops[-1].split(None, 1)
        if len(last) > 1:
            ops[-1] = last[0]; mods = last[1]
    i = Ins(); i.mn = mn; i.ops = ops; i.mods = mods
    R = lambda idx: set().union(*[regs_of(ops[k]) for k in idx if k < len(ops)]) if idx else set()
    n = len(ops)
    i.rd, i.wr = set(), set()
    i.kind = 'other'; i.passes = 0; i.srcc = set(); i.srcab = set()
    if mn.startswith('v_mfma') or mn.startswith('v_smfmac'):
        i.kind = 'mfma'
        i.passes = 8 if '32x32' in mn else 4
        i.wr = R([0])
        if mn.startswith('v_smfmac'):
            i.srcc = R([0]); i.srcab = R([1, 2, 3])
        else:
            i.srcc = R([3]); i.srcab = R([1, 2])
        i.rd = i.srcc | i.srcab
    elif mn.startswith('v_'):
        i.kind = 'valu'
        if mn.startswith('v_cmp'):
            i.wr = R([0]); i.rd = R(range(1, n))
            if mn.startswith('v_cmpx'): i.wr |= {('s', 'exec')}
        elif 'permlane' in mn and 'swap' in mn:
            i.wr = R([0, 1]); i.rd = R([0, 1]); i.kind = 'valu'; i.perm = True
        elif mn.startswith('v_readfirstlane') or mn.startswith('v_readlane'):
            i.wr = R([0]); i.rd = R(range(1, n))
        elif mn.startswith('v_add_co') or mn.startswith('v_sub_co') or mn.startswith('v_addc_co'):
            i.wr = R([0, 1]); i.rd = R(range(2, n))
        else:
            i.wr = R([0]); i.rd = R(range(1, n))
            if mn.startswith(('v_fmac', 'v_dot2c', 'v_pk_fmac', 'v_writelane')) or 'row_mask' in mods or 'dpp' in mn: i.rd |= i.wr
            if mn.startswith('v_cndmask') and n == 3: i.rd |= {('s', 'vcc')}
    elif mn.startswith('ds_'):
        i.kind = 'ds'
        if mn.startswith('ds_read') or mn.startswith('ds_bpermute') or mn.startswith('ds_swizzle'):
            i.wr = R([0]); i.rd = R(range(1, n))
        else:
            i.rd = R(range(n))
    elif mn.startswith('buffer_') or mn.startswith('global_'):
        i.kind = 'vmem'
        lds = ' lds' in (' ' + mods)
        if '_load' in mn and not lds and 'load_lds' not in mn:
            i.wr = R([0]); i.rd = R(range(1, n))
        elif 'atomic' in mn and 'sc0' in mods:
            i.wr = R([0]); i.rd = R(range(n))
        else:
            i.rd = R(range(n))
        if lds or 'load_lds' in mn: i.rd |= {('s', 'm0')}; i.dma = True
    elif mn.startswith('s_'):
        i.kind = 'salu'
        if mn.startswith(('s_cmp', 's_cbranch', 's_branch', 's_waitcnt', 's_barrier', 's_nop', 's_sleep', 's_endpgm', 's_setprio', 's_bitcmp')):
            i.rd = R(range(n))
        else:
            i.wr = R([0]); i.rd = R(range(1, n))
            if 'saveexec' in mn: i.wr |= {('s', 'exec')}
    i.dpp = ('dpp' in mn) or ('row_' in mods) or ('quad_perm' in mods)
    i.perm = getattr(i, 'perm', False)
    i.dma = getattr(i, 'dma', False)
    i.trans = mn.split('_e')[0] in TRANS or mn in TRANS
    i.widestore = i.kind == 'vmem' and ('store_dwordx4' in mn or 'store_dwordx3' in mn)
    i.states = 1
    if mn == 's_nop': i.states = int(ops[0], 0) + 1
    return i

def vec(s): return {r for r in s if r[0] in 'va'}
def sca(s): return {r for r in s if r[0] == 's'}

def need(p, c):
    n = 0
    if p.kind == 'mfma':
        D = p.wr
        k = {4: (6, 8, 3), 8: (10, 12, 7)}[p.passes]
        if c.kind == 'mfma':
            if c.srcab & D: n = max(n, k[1])
            if c.srcc & D:
                if not (c.srcc == D and c.mn == p.mn): n = max(n, k[0])
            elif c.wr & D: n = max(n, k[1])
        elif c.kind in ('valu', 'ds', 'vmem'):
            if (c.rd | c.wr) & D: n = max(n, k[1])
        if c.kind == 'valu' and (c.wr & p.srcc): n = max(n, k[2])
    if p.kind == 'valu':
        W = vec(p.wr); S = sca(p.wr)
        if c.kind == 'mfma' and (c.rd & W): n = max(n, 2)
        if c.kind == 'mfma' and ('s', 'exec') in S: n = max(n, 4)
        if c.kind == 'valu':
            if (c.dpp or c.perm) and (c.rd & W): n = max(n, 2)
            if c.mn.startswith(('v_readfirstlane', 'v_readlane')) and (c.rd & W): n = max(n, 1)
            if p.trans and (c.rd & W): n = max(n, 1)
            if S & c.rd: n = max(n, 2)
            if ('s', 'exec') in S and (c.dpp or c.perm or c.mn.startswith(('v_readfirstlane', 'v_readlane'))): n = max(n, 5)
        if c.kind == 'vmem' and (S & c.rd): n = max(n, 5)
        if c.kind == 'salu' and (S & c.rd) and not c.mn.startswith('s_cbranch'): n = max(n, 1)
    if p.mn.startswith('v_dot'):
        if c.mn == p.mn:
            if (c.rd - c.wr) & p.wr: n = max(n, 3)
        elif c.kind in ('valu', 'mfma', 'ds', 'vmem') and ((c.rd | c.wr) & p.wr): n = max(n, 3)
    if p.kind == 'salu':
        if ('s', 'm0') in p.wr and c.dma: n = max(n, 1)
    if p.widestore:
        data = regs_of(p.ops[0]) if p.mn.startswith('buffer') else set()
        if c.kind in ('valu', 'mfma') and (c.wr & data): n = max(n, 2)
        elif c.wr & data: n = max(n, 1)
    return n

class Asm:
    def __init__(self):
        self.lines = []; self.hist = []; self.nlab = 0
        self.dsq = []; self.vmq = []
        self.ninstr = 0
    def raw(self, s):
        self.lines.append(s)
    def label(self, prefix='L'):
        self.nlab += 1; return f'{prefix}_{self.nlab}'
    def _pending(self, c):
        req = 0; dist = 0
        for p in reversed(self.hist):
            r = need(p, c) if c is not None else self._worst(p)
            req = max(req, r - dist)
            dist += p.states
            if dist >= 20: break
        return req
    def _worst(self, p):
        if p.kind == 'mfma': return {4: 8, 8: 12}[p.passes]
        if p.kind == 'valu': return 5 if sca(p.wr) else (3 if p.mn.startswith('v_dot') else 2)
        if p.widestore: return 2
        if p.kind == 'salu' and ('s', 'm0') in p.wr: return 1
        return 0
    def _nop(self, n):
        while n > 0:
            k = min(n, 16)
            self.lines.append(f'  s_nop {k-1}'); self.hist.append(decode(f's_nop {k-1}')); n -= k; self.ninstr += 1
    def e(self, text, tag=None):
        for line in text.strip().split('\n'):
            s = line.strip()
            if not s or s.startswith(';'):
                continue
            if s.endswith(':'):
                self.place(s[:-1]); continue
            i = decode(s)
            if i.mn.startswith(('s_cbranch', 's_branch')):
                saved = self.hist
                self.hist = [p for p in saved]
                req = 0; dist = 0
                for p in reversed(self.hist):
                    w = self._worst(p)
                    if p.kind == 'valu' and p.mn.startswith('v_cmp') and p.wr == {('s', 'vcc')}: w = 0 if not self.strict_vcc else w
                    req = max(req, w - dist - 1); dist += p.states
                    if dist >= 20: break
                if not self.relaxed: self._nop(req)
            else:
                self._nop(self._pending(i))
            self.lines.append('  ' + s); self.hist.append(i); self.ninstr += 1
            if len(self.hist) > 40: self.hist = self.hist[-30:]
            if i.kind == 'ds': self.dsq.append(tag)
            if i.kind == 'vmem': self.vmq.append(tag)
            if i.mn == 's_waitcnt':
                m = re.search(r'lgkmcnt\((\d+)\)', s)
                if m: k = int(m.group(1)); self.dsq = self.dsq[len(self.dsq) - k:] if k else []
                m = re.search(r'vmcnt\((\d+)\)', s)
                if m: k = int(m.group(1)); self.vmq = self.vmq[len(self.vmq) - k:] if k else []
    strict_vcc = False
    relaxed = False
    def place(self, lab):
        self._nop(self._pending(None))
        self.lines.append(f'{lab}:'); self.hist = []
    def wait_ds(self, tag):
        idx = [k for k, t in enumerate(self.dsq) if t == tag]
        if not idx: return
        n = len(self.dsq) - 1 - idx[-1]
        self.e(f's_waitcnt lgkmcnt({min(n, 15)})')
    def wait_vm(self, tag):
        idx = [k for k, t in enumerate(self.vmq) if t == tag]
        if not idx: return
        n = len(self.vmq) - 1 - idx[-1]
        self.e(f's_waitcnt vmcnt({min(n, 63)})')
    def reset_q(self):
        self.dsq = []; self.vmq = []
    def text(self):
        return '\n'.join(self.lines) + '\n'

def vr(b, n=1, k='v'):
    return f'{k}{b}' if n == 1 else f'{k}[{b}:{b+n-1}]'
def ar(b, n=1): return vr(b, n, 'a')
def sr(b, n=1): return vr(b, n, 's')
```

```python
from asmlib import *
from layout import *
import struct, math

L_HI = 131072
L_MEM = 131072; L_KX = 139264; L_VX = 147456; L_QK = 155648; L_O = 159744; L_VMI = 161792; L_NONE = 0x30000
LDS_BYTES = 163840
MEM = 0
AQ, AK, AV = 32, 40, 48
WIN = 56
SEL, ONES, RD = 96, 100, 104
IDX, PARTST, PARTLD, MEMST, MEMLD, L16, WK0, WK1, QKW, XRD0, XRD1, KXRD0, VXRD, OW, VMW, TCH, KMST, JUNK = range(108, 126)
DMAK = 127
T0, T1 = 126, 127
WV = 128
WQ_A, WK_A, WO_A = 0, 128, 168
NREG_K = 5
WO_ORDER = [(tau, ks) for G in range(2) for ks in range(2) for tau in range(4 * G, 4 * G + 4)]
WO_LDS = WO_ORDER[11:]
WS = 4
SW = 8
sH, sWv, sStep, sMemRd, sTag, sKM, sPoll, sSeenA, sSeenB, sTmp, sTmp2, sC32K, sC4K, sTot, sSeg, sNeed, sFlg, sKXo, sVXo, sMK, sMV, sTch, sTchInc, sW10 = range(20, 44)
sVM, sVMI, sFl = 17, 18, 19
sExp, sF1s, sF1l, sF2s, sF2l = 8, 9, 10, 11, 16
sTmp3 = 3
sScale = 44
STAMP0 = 46

def srd(a, base, ka, size):
    a.e(f's_load_dwordx2 s[{base}:{base+1}], s[0:1], {ka}')
    a.e('s_waitcnt lgkmcnt(0)')
    a.e(f's_and_b32 s{base+1}, s{base+1}, 0xffff\ns_mov_b32 s{base+2}, {size}\ns_mov_b32 s{base+3}, 0x20000')

NCOMMON = 4
def TM(): return 's_memrealtime' if KN.get('raw') is not None else 's_memtime'
class Prof:
    NS = 14
    def __init__(self, a, on): self.a = a; self.on = on; self.order = []
    dump = None
    def init(self):
        if self.on:
            for i in range(self.NS): self.a.e(f's_mov_b32 s{STAMP0+36+i}, 0')
    def stamp(self, i, slot=None):
        if self.dump and self.dump[0] == i:
            a = self.a; b = self.dump[1]
            a.e('s_waitcnt vmcnt(0) lgkmcnt(0)\ns_nop 15')
            srd(a, 8, KA_OUT, 1 << 21)
            a.e(f's_lshl_b32 s3, s{sH}, 2\ns_add_u32 s3, s3, s{sWv}\ns_lshl_b32 s3, s3, 13\ns_add_u32 s3, s3, 65536')
            a.e(f'v_subrev_u32 v{T0}, {L_HI}, v{L16}\nv_lshlrev_b32 v{T0}, 3, v{T0}')
            for k in range(8): a.e(f'buffer_store_dwordx4 v[{b+4*k}:{b+4*k+3}], v{T0}, s[8:11], s3 offen offset:{16*k}')
            a.e(f's_waitcnt vmcnt(0)\ns_branch {self.dump[2]}')
        if self.on and (slot is not None or i in self.on):
            if slot is None:
                n = len(self.order); self.order.append(i)
            else: n = len(self.order) + slot
            self.a.e(f'{TM()} s[{STAMP0+8+2*n}:{STAMP0+9+2*n}]')
    raw = None
    def collect(self, extra):
        if self.on and self.raw is not None:
            a = self.a
            a.e(f's_waitcnt lgkmcnt(0)\ns_cmp_eq_u32 s{sStep}, {self.raw}')
            for n in range(0, NCOMMON + 4):
                a.e(f's_cselect_b32 s{STAMP0+36+n}, s{STAMP0+8+2*n}, s{STAMP0+36+n}')
        elif self.on:
            a = self.a
            a.e('s_waitcnt lgkmcnt(0)')
            for n in range(1, NCOMMON + extra):
                a.e(f's_sub_u32 s{STAMP0+4}, s{STAMP0+8+2*n}, s{STAMP0+6+2*n}\ns_add_u32 s{STAMP0+36+n}, s{STAMP0+36+n}, s{STAMP0+4}')

def lane_consts(a):
    e = a.e
    e('v_and_b32 v1, 15, v0\nv_lshrrev_b32 v2, 4, v0\nv_lshrrev_b32 v3, 5, v0\nv_and_b32 v4, 1, v2\nv_bfe_u32 v5, v1, 1, 1')
    e('v_lshrrev_b32 v6, 2, v1\nv_and_b32 v8, 1, v1\nv_lshl_add_u32 v6, v6, 1, v8\nv_lshlrev_b32 v7, 4, v0')
    e(f'v_mov_b32 v8, 0x4444\nv_mov_b32 v9, 0xeeee\nv_cmp_eq_u32 vcc, 1, v5\nv_cndmask_b32 v{IDX}, v8, v9, vcc')
    for q in range(4): e(f'v_mov_b32 v{ONES+q}, 0x3f803f80')
    e(f's_lshl_b32 s{sTmp}, s{sWv}, 16\ns_lshl_b32 s{sTmp2}, s{sH}, 8\ns_add_u32 s{sTmp}, s{sTmp}, s{sTmp2}\ns_add_u32 s{sTmp}, s{sTmp}, {PART}')
    e(f'v_lshrrev_b32 v8, 2, v1\nv_lshlrev_b32 v8, 13, v8\nv_and_b32 v9, 3, v1\nv_lshl_add_u32 v9, v2, 2, v9\nv_lshl_add_u32 v8, v9, 4, v8\nv_add_u32 v{PARTST}, s{sTmp}, v8')
    e(f'v_add_u32 v{L16}, {L_HI}, v7')
    e(f's_lshl_b32 s{sTmp}, s{sWv}, 12\nv_add_u32 v{WK0}, s{sTmp}, v7\nv_add_u32 v{WK1}, 0x10000, v{WK0}')
    e(f'v_lshrrev_b32 v8, 2, v1\nv_xor_b32 v8, v8, v2\nv_lshlrev_b32 v8, 3, v8\nv_lshl_add_u32 v8, v1, 5, v8\ns_lshl_b32 s{sTmp}, s{sWv}, 10\ns_add_u32 s{sTmp}, s{sTmp}, {L_QK}\nv_add_u32 v{QKW}, s{sTmp}, v8')
    e('v_lshrrev_b32 v8, 2, v1\nv_lshl_add_u32 v8, v4, 2, v8\nv_lshl_add_u32 v8, v3, 4, v8\nv_lshlrev_b32 v8, 5, v8\nv_and_b32 v9, 3, v1\nv_xor_b32 v9, v9, v4\nv_lshl_add_u32 v8, v9, 3, v8')
    e(f'v_add_u32 v{XRD0}, {L_QK}, v8\nv_xor_b32 v8, 16, v8\nv_add_u32 v{XRD1}, {L_QK + 256}, v8')
    e(f'v_lshrrev_b32 v8, 3, v1\nv_mul_u32_u24 v8, 24, v8\nv_and_b32 v9, 7, v1\nv_add_u32 v8, v8, v9\nv_lshlrev_b32 v8, 4, v8\nv_lshl_add_u32 v8, v2, 9, v8\nv_add_u32 v{KXRD0}, {L_KX}, v8')
    e(f'v_lshlrev_b32 v8, 4, v1\nv_lshl_add_u32 v8, v2, 9, v8\ns_lshl_b32 s{sTmp}, s{sWv}, 11\ns_add_u32 s{sTmp}, s{sTmp}, {L_VX}\nv_add_u32 v{VXRD}, s{sTmp}, v8')
    e(f's_lshl_b32 s{sTmp}, s{sWv}, 9\ns_add_u32 s{sTmp}, s{sTmp}, {L_O}')
    e(f'v_lshl_add_u32 v8, v3, 1, v1\nv_lshlrev_b32 v8, 4, v8\nv_lshl_add_u32 v8, v4, 3, v8\nv_add_u32 v8, s{sTmp}, v8')
    e(f'v_mov_b32 v9, {L_NONE}\nv_cmp_eq_u32 vcc, 1, v5\nv_cndmask_b32 v{OW}, v8, v9, vcc')
    e(f's_lshl_b32 s{sTmp}, s{sWv}, 9\ns_add_u32 s{sTmp}, s{sTmp}, {L_VMI}\nv_lshlrev_b32 v8, 4, v1\nv_lshl_add_u32 v8, v2, 2, v8\nv_add_u32 v{VMW}, s{sTmp}, v8')
    e('v_mov_b32 v9, 0')
    for q in range(4):
        e(f'v_mov_b32 v8, 0x3f80\nv_cmp_eq_u32 vcc, {2*q}, v1\nv_cndmask_b32 v{SEL+q}, v9, v8, vcc')
        e(f'v_mov_b32 v8, 0x3f800000\nv_cmp_eq_u32 vcc, {2*q+1}, v1\nv_cndmask_b32 v{SEL+q}, v{SEL+q}, v8, vcc')
    e(f's_lshl_b32 s{sTmp}, s{sH}, 13\ns_and_b32 s{sTmp2}, s{sWv}, 1\ns_lshl_b32 s{sTmp2}, s{sTmp2}, 7\ns_add_u32 s{sTmp}, s{sTmp}, s{sTmp2}\ns_add_u32 s{sTmp}, s{sTmp}, {PART}')
    e(f'v_lshrrev_b32 v8, 3, v1\nv_lshl_add_u32 v8, v8, 2, v2\nv_lshlrev_b32 v8, 8, v8\nv_and_b32 v9, 7, v1\nv_lshl_add_u32 v8, v9, 4, v8\nv_add_u32 v{PARTLD}, s{sTmp}, v8')
    e('v_bfe_u32 v8, v1, 2, 1\nv_lshlrev_b32 v8, 1, v8\nv_lshl_add_u32 v8, v4, 2, v8\nv_and_b32 v9, 1, v1\nv_add_u32 v8, v8, v9\nv_lshlrev_b32 v8, 4, v8\nv_lshl_add_u32 v8, v5, 3, v8\nv_lshl_add_u32 v8, v3, 2, v8')
    e(f's_lshl_b32 s{sTmp}, s{sH}, 8\ns_add_u32 s{sTmp}, s{sTmp}, s{sTmp2}\nv_add_u32 v8, s{sTmp}, v8\nv_mov_b32 v9, {OOB:#x}\nv_cmp_lt_u32 vcc, 7, v1\nv_cndmask_b32 v{MEMST}, v8, v9, vcc')
    e(f's_lshl_b32 s{sTmp}, s{sH}, 11\ns_lshl_b32 s{sTmp2}, s{sWv}, 9\ns_add_u32 s{sTmp}, s{sTmp}, s{sTmp2}\ns_add_u32 s{sTmp2}, s{sTmp}, {KM - 65536}\ns_add_u32 s{sTmp3}, s{sTmp}, {VM - 65536 - L_HI//2}')
    e(f'v_lshlrev_b32 v8, 4, v6\nv_lshl_add_u32 v8, v2, 7, v8\nv_add_u32 v8, s{sTmp2}, v8\nv_cmp_eq_u32 vcc, 1, v5\nv_cndmask_b32 v{KMST}, v9, v8, vcc')
    e(f's_lshl_b32 s{sTmp}, s{sWv}, 11\nv_add_u32 v{MEMLD}, s{sTmp}, v7')
    e(f's_add_u32 s{sMK}, s{sTmp}, {L_KX}\ns_add_u32 s{sMV}, s{sTmp}, {L_VX}\ns_lshl_b32 s{sW10}, s{sWv}, 10')
    l23, le = a.label('Lt'), a.label('Lt')
    e(f's_lshl_b32 s{sTmp}, s{sH}, 13\nv_lshlrev_b32 v8, 7, v0\nv_add_u32 v{TCH}, s{sTmp}, v8\ns_mov_b32 s{sTchInc}, 0x40000')
    e(f's_mul_i32 s{sTch}, s{sWv}, {VX - KX}\ns_add_u32 s{sTch}, s{sTch}, {KX + 0x40000}')
    e(f's_add_u32 s{sKXo}, s{sTmp}, {KX}\ns_add_u32 s{sVXo}, s{sTmp}, {VX}')
    e(f's_cmp_lt_u32 s{sWv}, 2\ns_cbranch_scc1 {le}')
    e(f's_lshl_b32 s{sTmp}, s{sH}, 8\nv_lshlrev_b32 v8, 7, v0\nv_add_u32 v8, s{sTmp}, v8\ns_xor_b32 s{sTmp}, s{sWv}, 3\ns_lshl_b32 s{sTmp}, s{sTmp}, 1\nv_cmp_gt_u32 vcc, s{sTmp}, v0\nv_cndmask_b32 v{TCH}, v9, v8, vcc')
    e(f's_mov_b32 s{sTch}, {MEMX + 16384}\ns_mov_b32 s{sTchInc}, 8192')
    e(f'{le}:')
    e(f's_lshl_b32 s{sTmp}, s{sH}, 7\ns_add_u32 s{sFlg}, s{sTmp}, {FLAGS + F_KM*128}')
    e(f's_mov_b32 s{sC32K}, 32768\ns_mov_b32 s{sC4K}, 4096')
    c = struct.unpack('<I', struct.pack('<f', 128 ** -0.5 * math.log2(math.e)))[0]
    e(f's_mov_b32 s{sScale}, {c:#x}\ns_mov_b32 s{sScale+1}, {c:#x}')

def hint_consts(a):
    n = KN.get('pn', 4); m = 32 // n - 1
    a.e(f's_add_u32 s{sTmp}, s{sH}, s{sWv}\ns_and_b32 s{sTmp}, s{sTmp}, {m}\ns_lshl_b32 s{sTmp}, s{sTmp}, 8\ns_and_b32 s{sTmp2}, s{sWv}, 1\ns_lshl_b32 s{sTmp2}, s{sTmp2}, 7\ns_add_u32 s{sF2l}, s{sTmp}, s{sTmp2}')
    a.e(f's_lshl_b32 s{sF1l}, s{sH}, 13\ns_add_u32 s{sF1l}, s{sF1l}, s{sF2l}\ns_add_u32 s{sF1l}, s{sF1l}, {PART}\ns_mov_b32 s{sExp}, 0')

def init_exchange(a):
    e = a.e
    W = f's[{WS}:{WS+3}]'
    e('v_mov_b32 v12, 1\nv_mov_b32 v13, 1\nv_mov_b32 v14, 1\nv_mov_b32 v15, 1')
    e(f'buffer_store_dwordx4 v[12:15], v{PARTST}, {W}, 0 offen sc1\nbuffer_store_dwordx4 v[12:15], v{PARTST}, {W}, s{sC32K} offen sc1')
    e('v_mov_b32 v16, -1\nv_mov_b32 v17, -1\nv_mov_b32 v18, -1\nv_mov_b32 v19, -1')
    e(f's_lshl_b32 s{sTmp}, s{sH}, 8\ns_lshl_b32 s{sTmp2}, s{sWv}, 18\ns_add_u32 s{sTmp}, s{sTmp}, s{sTmp2}\ns_add_u32 s{sTmp}, s{sTmp}, {MEMX}')
    e(f'v_lshlrev_b32 v10, 13, v2\nv_lshl_add_u32 v10, v1, 4, v10\nv_add_u32 v10, s{sTmp}, v10')
    srd(a, SW, KA_MEM0, 8192)
    e(f's_lshl_b32 s{sTmp}, s{sH}, 5\nv_lshlrev_b32 v11, 10, v6\nv_lshl_add_u32 v11, v5, 4, v11\nv_add_u32 v11, s{sTmp}, v11')
    e(f'buffer_load_dwordx4 v[20:23], v11, s[{SW}:{SW+3}], 0 offen')
    e(f's_and_b32 s{sTmp}, s{sWv}, 1\ns_lshl_b32 s{sTmp}, s{sTmp}, 4\ns_xor_b32 s{sTmp}, s{sTmp}, 16')
    e(f's_waitcnt vmcnt(0)\nv_cmp_gt_u32 vcc, s{sTmp}, v0')
    for i in range(4): e(f'v_cndmask_b32 v{20+i}, v{16+i}, v{20+i}, vcc')
    e(f'buffer_store_dwordx4 v[20:23], v10, {W}, 0 offen sc1')
    for i in range(1, 8):
        e(f's_mov_b32 s{sTmp}, {i*32768}\nbuffer_store_dwordx4 v[16:19], v10, {W}, s{sTmp} offen sc1')

def lds_frag_addr(f, hf):
    ks, t = f >> 1, f & 1
    return (WK0 if ks < 4 else WK1), (ks % 4) * 16384 + t * 2048 + hf * 1024

def load_weights(a):
    e = a.e
    e('v_lshlrev_b32 v8, 1, v2\nv_xor_b32 v8, v8, v1\nv_lshlrev_b32 v8, 4, v8\nv_lshl_add_u32 v10, v2, 13, v8\nv_xor_b32 v11, 0x80, v10')
    fo = lambda r: (r & 1) | ((r & 2) << 2)
    for i in range(4): e(f'v_xor_b32 v{12+i}, {fo(i)*16}, v7')
    e('v_lshrrev_b32 v8, 2, v1\nv_lshl_add_u32 v8, v4, 2, v8\nv_lshl_add_u32 v9, v3, 4, v8')
    e(f's_lshl_b32 s{sTmp}, s{sWv}, 2\nv_add_u32 v22, s{sTmp}, v5\nv_lshlrev_b32 v23, 1, v8\nv_xor_b32 v22, v22, v23\nv_lshlrev_b32 v22, 4, v22\nv_lshl_add_u32 v22, v9, 8, v22')
    e('v_and_b32 v23, 1, v1\nv_lshl_add_u32 v16, v23, 3, v22\nv_xor_b32 v17, 32, v16\nv_add_u32 v18, 0x10000, v16\nv_add_u32 v19, 0x10000, v17')
    e('v_and_b32 v22, 2, v8\nv_lshlrev_b32 v22, 2, v22\nv_and_b32 v20, 1, v8\nv_or_b32 v22, v22, v20')
    e(f's_lshl_b32 s{sTmp}, s{sWv}, 4\nv_and_b32 v20, 3, v1\nv_lshlrev_b32 v20, 1, v20\nv_add_u32 v20, s{sTmp}, v20\nv_xor_b32 v20, v20, v22\nv_lshlrev_b32 v20, 4, v20\nv_lshl_add_u32 v20, v9, 10, v20')
    mats = [('q', KA_WQ), ('o', KA_WO), ('v', KA_WV), ('k', KA_WK)]
    bases = [8, 12, 16, 56]
    for (m, ka), b in zip(mats, bases): srd(a, b, ka, 4194304)
    def dma(i):
        m = mats[i // 8][0]; b = bases[i // 8]; k = i % 8
        for j in range(4):
            if m == 'o':
                e(f's_lshl_b32 s{sTmp}, s{sH}, 17\ns_lshl_b32 s{sTmp2}, s{sWv}, 12\ns_add_u32 s{sTmp}, s{sTmp}, s{sTmp2}\ns_add_u32 s{sTmp}, s{sTmp}, {k*16384 + j*1024}')
                src = 12 + j
            else:
                e(f's_lshl_b32 s{sTmp}, s{sH}, 8\ns_lshl_b32 s{sTmp2}, s{sWv}, 17\ns_add_u32 s{sTmp}, s{sTmp}, s{sTmp2}\ns_add_u32 s{sTmp}, s{sTmp}, {(64*k + 4*j)*8192}')
                src = 10 + (j & 1)
            e(f's_lshl_b32 s{sTmp2}, s{sWv}, 12\ns_add_u32 m0, s{sTmp2}, {k*16384 + j*1024}')
            e(f'buffer_load_dwordx4 v{src}, s[{b}:{b+3}], s{sTmp} offen lds', tag=('w', i))
    def place(dst, kind, tmp):
        for E in range(2):
            for x, y in enumerate((0, 2, 1, 3)):
                if kind == 'a': e(f'v_accvgpr_write_b32 a{dst+4*E+x}, v{tmp+4*E+y}')
                else: e(f'v_mov_b32 v{dst+4*E+x}, v{tmp+4*E+y}')
    PARK = WIN
    e('s_waitcnt vmcnt(0)')
    a.reset_q()
    for i in range(8): dma(i)
    pend_free = []; pend_wb = []
    for i in range(33):
        if i < 32: a.wait_vm(('w', i))
        e('s_barrier')
        for f in pend_free:
            if f + 8 < 32: dma(f + 8)
        pend_free = []
        for f, src in pend_wb:
            for hf in range(2):
                b, off = lds_frag_addr(f, hf)
                e(f'ds_write_b128 v{b}, v[{src+4*hf}:{src+4*hf+3}] offset:{off}')
        pend_wb = []
        if i == 32: break
        m = mats[i // 8][0]; k = i % 8
        if m != 'o':
            e('s_waitcnt lgkmcnt(0)')
            for t in range(2):
                for E in range(2):
                    for p in range(2):
                        d = 24 + 8 * t + 4 * E + 2 * p
                        e(f'ds_read_b64_tr_b16 v[{d}:{d+1}], v{(16 if k < 4 else 18) + t} offset:{(k%4)*16384 + E*8192 + p*2048}')
            e('s_waitcnt lgkmcnt(0)')
            for t in range(2):
                f = 2 * k + t
                if m == 'q': place(WQ_A + f * 8, 'a', 24 + 8 * t)
                elif m == 'v': place(WV + f * 8, 'v', 24 + 8 * t)
                elif f < NREG_K:
                    place(WK_A + f * 8, 'a', 24 + 8 * t); pend_wb.append((f, PARK + 8 * f))
                else:
                    place(40 + 8 * t, 'v', 24 + 8 * t); pend_wb.append((f, 40 + 8 * t))
            if m != 'k': pend_free = [i]
        elif k % 4 == 3:
            ks = k // 4
            for tau in range(8):
                G, tp = tau >> 2, tau & 3
                e(f'v_xor_b32 v22, {(tp >> 1) * 16 + G * 128}, v20\nv_add_u32 v22, {ks * 0x10000 + (tp & 1) * 8}, v22')
                for E in range(2):
                    for p in range(2):
                        d = 24 + 4 * E + 2 * p
                        e(f'ds_read_b64_tr_b16 v[{d}:{d+1}], v22 offset:{E*32768 + p*8192}')
                e('s_waitcnt lgkmcnt(0)')
                n = WO_ORDER.index((tau, ks))
                if n < 11: place(WO_A + n * 8, 'a', 24)
                else: place(PARK + (n - 11) * 8, 'v', 24)
            pend_free = [i - 3, i - 2, i - 1, i]
    e('s_waitcnt lgkmcnt(0)')

def frag_read(a, f, slot, tag):
    for hf in range(2):
        d = WIN + 8 * slot + 4 * hf
        b, off = lds_frag_addr(f, hf)
        a.e(f'ds_read_b128 v[{d}:{d+3}], v{b} offset:{off}', tag=tag)

def poll_fail(a, top, abort, n_wb=64):
    e = a.e
    e(f's_add_u32 s{sPoll}, s{sPoll}, 1\ns_and_b32 s{sTmp}, s{sPoll}, {n_wb-1}\ns_cmp_lg_u32 s{sTmp}, 0\ns_cbranch_scc1 {top}')
    e(f'buffer_wbl2 sc1\ns_waitcnt vmcnt(0)\ns_cmp_lt_u32 s{sPoll}, 0x40000\ns_cbranch_scc1 {top}\ns_branch {abort}')

def win_prefetch(a):
    for f in range(5): frag_read(a, NREG_K + f, f, ('wk', NREG_K + f))

def acc_clear(a, lo=AQ, hi=AV):
    for r in range(lo, hi, 2): a.e(f'v_mov_b64 v[{r}:{r+1}], 0')

class Cold:
    def __init__(self): self.fns = []

def kv_check(a, cold, abort):
    e = a.e
    ok, slow = a.label('Lkv'), a.label('Lkvs')
    e(f's_lshr_b32 s{sNeed}, s{sSeg}, 1\ns_bitcmp1_b32 s{sSeg}, 0\ns_cselect_b32 s{sTmp2}, s{sSeenB}, s{sSeenA}')
    e(f's_cmp_le_u32 s{sTmp2}, s{sNeed}\ns_cbranch_scc1 {slow}')
    e(f'{ok}:')
    def f():
        top = a.label('Lkvt')
        e(f'{slow}:\ns_mov_b32 s{sPoll}, 0\n{top}:')
        e(f's_and_b32 s{sTmp}, s{sSeg}, 1\ns_lshl_b32 s{sTmp2}, s{sH}, 1\ns_add_u32 s{sTmp}, s{sTmp}, s{sTmp2}\ns_lshl_b32 s{sTmp}, s{sTmp}, 7\ns_add_u32 s{sTmp}, s{sTmp}, {FLAGS + F_KV*128}')
        e(f'buffer_load_dword v{JUNK}, off, s[{WS}:{WS+3}], s{sTmp} sc1\ns_waitcnt vmcnt(0)\nv_readfirstlane_b32 s{sTmp2}, v{JUNK}')
        e(f's_bitcmp1_b32 s{sSeg}, 0\ns_cselect_b32 s{sSeenA}, s{sSeenA}, s{sTmp2}\ns_cselect_b32 s{sSeenB}, s{sTmp2}, s{sSeenB}')
        e(f's_cmp_gt_u32 s{sTmp2}, s{sNeed}\ns_cbranch_scc1 {ok}\ns_sleep 2')
        poll_fail(a, top, abort, 256)
    cold.fns.append(f)

def dmak(a):
    a.e(f'v_lshrrev_b32 v{DMAK}, 1, v{MEMLD}\nv_and_b32 v{DMAK}, 0x80, v{DMAK}\nv_xor_b32 v{DMAK}, v{DMAK}, v{MEMLD}')

def dma_ops(a):
    W = f's[{WS}:{WS+3}]'
    return [f's_mov_b32 m0, s{sMK}\ns_add_u32 s{sSeg}, s{sSeg}, 1\nbuffer_load_dwordx4 v{DMAK}, {W}, s{sKXo} offen sc1 lds',
            f'buffer_load_dwordx4 v{DMAK}, {W}, s{sKXo} offen offset:1024 sc1 lds\ns_add_u32 s{sKXo}, s{sKXo}, 0x40000',
            f's_mov_b32 m0, s{sMV}\ns_nop 0\nbuffer_load_dwordx4 v{MEMLD}, {W}, s{sVXo} offen sc1 lds',
            f'buffer_load_dwordx4 v{MEMLD}, {W}, s{sVXo} offen offset:1024 sc1 lds\ns_add_u32 s{sVXo}, s{sVXo}, 0x40000']

def probe(a, cold, abort, addr, soff, test):
    e = a.e
    depth = KN.get('pd', 2)
    top, slow = a.label('Lpr'), a.label('Lprs')
    ld = f'buffer_load_dword v{JUNK}, v{addr}, s[{WS}:{WS+3}], {soff} offen sc1'
    e(f's_mov_b32 s{sPoll}, 0')
    for k in range(depth):
        e(ld); a._nop(KN.get('pg', 12))
    a.lines.append(f'{top}:'); a.hist = []
    e(f'{ld}\ns_add_u32 s{sPoll}, s{sPoll}, 1\ns_bitcmp1_b32 s{sPoll}, 8\ns_cbranch_scc1 {slow}')
    a._nop(KN.get('pl', 0))
    e(f's_waitcnt vmcnt({depth})')
    test()
    if KN.get('any'): e(f's_cmp_eq_u64 vcc, -1\ns_cbranch_scc1 {top}')
    else: e(f's_cbranch_vccnz {top}')
    def f():
        e(f'{slow}:\ns_mov_b32 s{sPoll}, 0\ns_add_u32 s{STAMP0+5}, s{STAMP0+5}, 1\nbuffer_wbl2 sc1\ns_waitcnt vmcnt(0)')
        e(f's_cmp_lt_u32 s{STAMP0+5}, 0x1000\ns_cbranch_scc1 {top}\ns_branch {abort}')
    cold.fns.append(f)

def probe_addr(a, strideshift):
    n = KN.get('pn', 4)
    sh = strideshift + (32 // n).bit_length() - 1
    a.e(f'v_bfe_u32 v{T1}, v{L16}, 4, {n.bit_length()-1}\nv_lshlrev_b32 v{T1}, {sh}, v{T1}')

H2A = MEM + 24
def hop2(a, cold, abort, first):
    e = a.e
    b = H2A
    top, slow = a.label('Lh2'), a.label('Lh2s')
    e(f'v_add_u32 v{T0}, {L_MEM}, v{MEMLD}')
    if not first:
        probe_addr(a, 8)
        e(f's_add_u32 s{sTmp2}, s{sMemRd}, s{sF2l}')
        probe(a, cold, abort, T1, f's{sTmp2}', lambda: e(f'v_cmp_eq_u32 vcc, -1, v{JUNK}'))
    a.lines.append(f'{top}:'); a.hist = []
    for i in range(2): e(f'buffer_load_dwordx4 v[{b+4*i}:{b+4*i+3}], v{MEMLD}, s[{WS}:{WS+3}], s{sMemRd} offen offset:{i*1024} sc1')
    return top, slow

def hop2_finish(a, cold, abort, top, slow):
    e = a.e
    b = H2A
    for i in range(2): e(f's_waitcnt vmcnt({1-i})\nds_write_b128 v{T0}, v[{b+4*i}:{b+4*i+3}] offset:{i*1024}')
    e(f'v_max3_u32 v{RD}, v{b}, v{b+1}, v{b+2}\nv_max3_u32 v{RD+1}, v{b+3}, v{b+4}, v{b+5}\nv_max3_u32 v{RD}, v{RD}, v{b+6}, v{b+7}\nv_max_u32 v{RD}, v{RD}, v{RD+1}\nv_cmp_eq_u32 vcc, -1, v{RD}')
    e(f's_cbranch_vccnz {slow}')
    def f():
        e(f'{slow}:\ns_add_u32 s{STAMP0+6}, s{STAMP0+6}, 1\ns_waitcnt lgkmcnt(0)')
        poll_fail(a, top, abort)
    cold.fns.append(f)

def publish_read(a):
    a.e(f'v_add_u32 v{T0}, s{sW10}, v{XRD0}\nv_add_u32 v{T1}, s{sW10}, v{XRD1}')
    a.e(f'ds_read_b64_tr_b16 v[{RD}:{RD+1}], v{T0}\nds_read_b64_tr_b16 v[{RD+2}:{RD+3}], v{T1}')
    a.e(f'v_lshrrev_b32 v{T1}, 1, v{L16}\nv_add_u32 v{T0}, s{sVMI}, v{T1}')
    a.e(f'ds_read_b64 v[{AV}:{AV+1}], v{T0}', tag='pub')

def publish_ops():
    W = f's[{WS}:{WS+3}]'
    return [f'buffer_store_dwordx4 v[{RD}:{RD+3}], v{KMST}, {W}, s{sKM} offen sc1\ns_add_u32 s{sKM}, s{sKM}, 65536',
            f'buffer_store_dwordx2 v[{AV}:{AV+1}], v{T1}, {W}, s{sVM} offen sc1\ns_add_u32 s{sVM}, s{sVM}, 65536']

VS = [2, 4, 4, 2]
KN = {}

def step_body(a, P, last, cold, abort):
    e = a.e
    W = f's[{WS}:{WS+3}]'
    a.reset_q()
    rdm = lambda ks: e(f'ds_read_b128 v[{MEM+4*ks}:{MEM+4*ks+3}], v{L16} offset:{L_MEM-L_HI+ks*1024}', tag=('m', ks))
    for ks in range(8): rdm(ks)
    sm = lambda acc, A, B: e(f'v_smfmac_f32_16x16x64_bf16 v[{acc}:{acc+3}], v[{A}:{A+3}], {B}, v{IDX}')
    KXF = lambda T, kt: WIN + 8 * ((T + 1) % 5) + 4 * kt
    VXF = lambda t: WIN + 4 * t
    pub = publish_ops() if not KN.get('no_pub') else []
    side = {}
    side[(1, 1)] = lambda: publish_read(a)
    if not KN.get('no_touch'): side[(1, 3)] = lambda: e(f's_add_u32 s{sTot}, s{sTot}, 1\nbuffer_load_dword v{JUNK}, v{TCH}, {W}, s{sTch} offen sc1')
    else: side[(1, 3)] = lambda: e(f's_add_u32 s{sTot}, s{sTot}, 1')
    def st(i):
        a.wait_ds('pub')
        if pub: e(pub[i])
    side[(2, 1)] = lambda: st(0)
    side[(3, 1)] = lambda: st(1)
    side[(4, 0)] = lambda: e(f's_sub_u32 s{sTmp}, s{sTot}, 2\ns_max_i32 s{sFl}, s{sFl}, s{sTmp}\nv_mov_b32 v{T0}, s{sFl}')
    side[(4, 1)] = (lambda: e(f'buffer_store_dword v{T0}, off, {W}, s{sFlg} sc1')) if pub else (lambda: None)
    side[(5, 0)] = lambda: e(f'v_xor_b32 v{T1}, 0x80, v{KXRD0}')
    for n, key in enumerate(((5, 1), (6, 0), (6, 1), (7, 0))): side[key] = (lambda r: lambda: e(f'v_mov_b64 v[{r}:{r+1}], 0'))(AV + 2 * n)
    def do_side(ks, p):
        if (ks, p) in side: side.pop((ks, p))()
    for ks in range(8):
        a.wait_ds(('m', ks))
        if ks in (1, 4): P.stamp(f'qk{ks}')
        A = MEM + 4 * ks
        for t in range(2):
            if not last: sm(AQ + 4 * t, A, ar(WQ_A + (2 * ks + t) * 8, 8))
            do_side(ks, t)
        for t in range(2):
            f = 2 * ks + t
            if f < NREG_K:
                sm(AK + 4 * t, A, ar(WK_A + f * 8, 8)); do_side(ks, 2 + t); continue
            a.wait_ds(('wk', f))
            slot = (f - NREG_K) % 5
            sm(AK + 4 * t, A, vr(WIN + 8 * slot, 8))
            if f + 5 < 16: frag_read(a, f + 5, slot, ('wk', f + 5))
            elif not last:
                n = f - 11
                if n < 4:
                    for kt in range(2): e(f'ds_read_b128 v[{KXF(n, kt)}:{KXF(n, kt)+3}], v{T1 if kt else KXRD0} offset:{n*2048}', tag=('kx', n))
                else:
                    for t2 in range(2): e(f'ds_read_b128 v[{VXF(t2)}:{VXF(t2)+3}], v{VXRD} offset:{t2*256}', tag='vx')
    assert not side
    P.stamp('qkend')
    vq = [(ks, t) for ks in range(8) for t in range(2)]
    def vs(n):
        for _ in range(n):
            if vq:
                ks, t = vq.pop(0); sm(AV + 4 * t, MEM + 4 * ks, vr(WV + (2 * ks + t) * 8, 8))
    pk_add = lambda r: e(f'v_pk_add_f32 v[{r}:{r+1}], v[{r}:{r+1}], v[{r+2}:{r+3}]')
    vs(VS[0])
    if not last:
        for t in range(2): pk_add(AQ + 4 * t)
        for t in range(2): e(f'v_cvt_pk_bf16_f32 v{AQ+4*t+2}, v{AQ+4*t}, v{AQ+4*t+1}')
    for t in range(2): pk_add(AK + 4 * t)
    for t in range(2):
        e(f'v_cvt_pk_bf16_f32 v{AQ+4*t+3}, v{AK+4*t}, v{AK+4*t+1}')
        e(f'ds_write_b64 v{QKW}, v[{AQ+4*t+2}:{AQ+4*t+3}] offset:{t*512}')
    vs(VS[1])
    e('s_waitcnt lgkmcnt(0)\ns_barrier')
    P.stamp('B2')
    XF = lambda T: AQ + 4 * T
    S0, S1, SM = MEM, MEM + 4, MEM + 8
    VMA, VMB = MEM + 12, MEM + 14
    PX, PMQ = MEM + 16, MEM + 20
    if last:
        vs(16); pk_add(AV); pk_add(AV + 4)
        e(f'v_cvt_pk_bf16_f32 v{VMA}, v{AV}, v{AV+1}\nv_cvt_pk_bf16_f32 v{VMB}, v{AV+4}, v{AV+5}')
        e(f'ds_write2_b32 v{VMW}, v{VMA}, v{VMB} offset0:0 offset1:64')
        e('s_waitcnt lgkmcnt(0)')
        return
    for T in range(4):
        e(f'ds_read_b64_tr_b16 v[{XF(T)}:{XF(T)+1}], v{XRD0} offset:{T*1024}', tag=('x', T))
        e(f'ds_read_b64_tr_b16 v[{XF(T)+2}:{XF(T)+3}], v{XRD1} offset:{T*1024}', tag=('x', T))
    vs(VS[2])
    P.stamp('sc0')
    mf = lambda D, A, B, C: e(f'v_mfma_f32_16x16x32_bf16 v[{D}:{D+3}], v[{A}:{A+3}], v[{B}:{B+3}], {C}')
    wo = [(n, hf) for n in range(4) for hf in range(2)]
    def wo_rd(upto):
        if wo and wo[0][0] <= upto:
            n, hf = wo.pop(0); d = WIN + 8 * ((n + 1) % 5) + 4 * hf; b, off = lds_frag_addr(n, hf)
            e(f'ds_read_b128 v[{d}:{d+3}], v{b} offset:{off}', tag=('wo', 11 + n))
    for T in range(4):
        a.wait_ds(('x', T))
        C = lambda D: '0' if T == 0 else f'v[{D}:{D+3}]'
        for D, A in ((S0, KXF(T, 0)), (S1, KXF(T, 1)), (SM, XF(T))):
            mf(D, A, XF(T), C(D)); wo_rd(T - 1)
        if T == 0: e(f'v_mov_b32 v{VMA+1}, 0')
        if T == 1: e(f'v_mov_b32 v{VMB+1}, 0')
    vs(VS[3]); wo_rd(3); wo_rd(3)
    assert len(vq) <= 4
    e(f'v_mov_b32 v{PMQ+1}, 0\nv_mov_b64 v[{PMQ+2}:{PMQ+3}], 0')
    P.stamp('sc1')
    e(f'v_max3_f32 v{T0}, v{S0}, v{S0+1}, v{S0+2}\nv_max3_f32 v{T1}, v{S1}, v{S1+1}, v{S1+2}\nv_max3_f32 v{T0}, v{T0}, v{S0+3}, v{S1+3}')
    e(f'v_max3_f32 v{T1}, v{T1}, v{SM+2}, v{SM+3}\nv_max_f32 v{T0}, v{T0}, v{T1}')
    e(f'v_mov_b32 v{T1}, v{T0}'); vs(1)
    e(f'v_permlane32_swap_b32 v{T0}, v{T1}\nv_max_f32 v{T0}, v{T0}, v{T1}')
    e(f'v_mov_b32 v{T1}, v{T0}'); vs(1)
    e(f'v_permlane16_swap_b32 v{T0}, v{T1}\nv_max_f32 v{T0}, v{T0}, v{T1}')
    e(f'v_mul_f32 v{T0}, s{sScale}, v{T0}')
    vs(16)
    regs = [S0, S0 + 2, S1, S1 + 2, SM + 2]
    for r in regs: e(f'v_pk_fma_f32 v[{r}:{r+1}], v[{r}:{r+1}], s[{sScale}:{sScale+1}], v[{T0}:{T0+1}] op_sel_hi:[1,1,0] neg_lo:[0,0,1] neg_hi:[0,0,1]')
    for r in regs: e(f'v_exp_f32 v{r}, v{r}\nv_exp_f32 v{r+1}, v{r+1}')
    for i, r in enumerate(regs): e(f'v_cvt_pk_bf16_f32 v{PX+i}, v{r}, v{r+1}')
    P.stamp('sm')
    O0, O1, LS = AQ, AQ + 4, AK
    acc = lambda D: f'v[{D}:{D+3}]'
    mf(LS, ONES, PX, '0'); pk_add(AV)
    mf(LS, ONES, PMQ, acc(LS)); pk_add(AV + 4)
    mf(O0, VXF(0), PX, '0'); e(f'v_cvt_pk_bf16_f32 v{VMA}, v{AV}, v{AV+1}')
    mf(O1, VXF(1), PX, '0'); e(f'v_cvt_pk_bf16_f32 v{VMB}, v{AV+4}, v{AV+5}')
    e(f'v_rcp_f32 v{T0}, v{LS}')
    mf(O0, VMA, PMQ, acc(O0)); e(f'ds_write2_b32 v{VMW}, v{VMA}, v{VMB} offset0:0 offset1:64')
    mf(O1, VMB, PMQ, acc(O1))
    acc_clear(a, MEM, MEM + 12)
    dmak(a)
    for t in range(2):
        for i in range(2): e(f'v_pk_mul_f32 v[{O0+4*t+2*i}:{O0+4*t+2*i+1}], v[{O0+4*t+2*i}:{O0+4*t+2*i+1}], v[{T0}:{T0+1}] op_sel_hi:[1,0]')
        e(f'v_cvt_pk_bf16_f32 v{AK+2*t}, v{O0+4*t}, v{O0+4*t+1}\nv_cvt_pk_bf16_f32 v{AK+2*t+1}, v{O0+4*t+2}, v{O0+4*t+3}')
        e(f'ds_write_b64 v{OW}, v[{AK+2*t}:{AK+2*t+1}] offset:{t*256}', tag='ow')
    frag_read(a, 4, 0, ('wo', 15))
    acc_clear(a, MEM + 12, MEM + 16)
    q = list(a.dsq)
    kv_check(a, cold, abort)
    a.dsq = q
    dm = dma_ops(a) if not KN.get('no_dma') else []
    nd = KN.get('nd', 1)
    for x in dm[:nd]: e(x)
    a.wait_ds('ow')
    e('s_barrier')
    P.stamp('B3')
    OA = AV
    for ks in range(2): e(f'ds_read_b128 v[{OA+4*ks}:{OA+4*ks+3}], v{L16} offset:{L_O-L_HI+ks*1024}', tag=('oa', ks))
    for x in dm[nd:nd+2]: e(x)
    PK = AQ
    wq = list(enumerate(WO_ORDER))
    def ws(n):
        for _ in range(n):
            if wq:
                i, (tau, ks) = wq.pop(0); a.wait_ds(('oa', ks))
                sm(MEM + 4 * tau, OA + 4 * ks, ar(WO_A + i * 8, 8) if i < 11 else vr(WIN + 8 * ((i - 10) % 5), 8))
    def pack_ops(G):
        ops = [f'v_pk_add_f32 v[{x}:{x+1}], v[{x}:{x+1}], v[{x+2}:{x+3}]' for x in range(MEM + 16 * G, MEM + 16 * G + 16, 4)]
        ops += [f'v_cvt_pk_bf16_f32 v{PK+4*G+i}, v{MEM+16*G+4*i}, v{MEM+16*G+4*i+1}' for i in range(4)]
        ops.insert(5, f'v_and_or_b32 v{PK+4*G}, v{PK+4*G}, -2, s{sTag}')
        ops.append(f'buffer_store_dwordx4 v[{PK+4*G}:{PK+4*G+3}], v{PARTST}, {W}, {"0" if G == 0 else "s%d" % sC32K} offen {KN.get("stf", "")}')
        return ops
    for r in range(MEM + 16, MEM + 32, 2):
        ws(1); e(f'v_mov_b64 v[{r}:{r+1}], 0')
        if r == MEM + 16:
            for x in dm[nd+2:]: e(x)
    ws(1)
    ops = pack_ops(0)
    while wq:
        ws(1); e(ops.pop(0))
    for x in ops: e(x)
    for x in pack_ops(1): e(x)
    P.stamp('wo')

def hop1(a, cold, abort):
    e = a.e
    W = f's[{WS}:{WS+3}]'
    b = MEM
    top, slow = a.label('Lh1'), a.label('Lh1s')
    probe_addr(a, 8)
    probe(a, cold, abort, T1, f's{sF1l}', lambda: e(f'v_and_b32 v{T0}, 1, v{JUNK}\nv_cmp_ne_u32 vcc, s{sTag}, v{T0}'))
    a.lines.append(f'{top}:'); a.hist = []
    for i in range(4):
        e(f'buffer_load_dwordx4 v[{b+4*i}:{b+4*i+3}], v{PARTLD}, {W}, {"0" if i < 2 else "s%d" % sC4K} offen offset:{(i%2)*2048} sc1')
    for i in range(4):
        e(f's_waitcnt vmcnt({3-i})')
        e(f'v_mfma_f32_16x16x32_bf16 v[{RD}:{RD+3}], v[{b+4*i}:{b+4*i+3}], v[{SEL}:{SEL+3}], {"0" if i == 0 else "v[%d:%d]" % (RD, RD+3)}')
        if i == 0: e(f'v_xor_b32 v{T0}, s{sTag}, v{b}')
        else: e(f'v_bitop3_b32 v{T0}, v{T0}, v{b+4*i}, s{sTag} bitop3:0xf6')
    e(f'v_and_b32 v{T0}, 1, v{T0}\nv_cmp_ne_u32 vcc, 0, v{T0}\ns_cbranch_vccnz {slow}')
    e(f'v_permlane32_swap_b32 v{RD}, v{RD+2}\nv_permlane32_swap_b32 v{RD+1}, v{RD+3}\nv_pk_add_f32 v[{RD}:{RD+1}], v[{RD}:{RD+1}], v[{RD+2}:{RD+3}]')
    e(f'v_cvt_pk_bf16_f32 v{RD+2}, v{RD}, v{RD+1}\nbuffer_store_dword v{RD+2}, v{MEMST}, {W}, s{sMemRd} offen')
    def f():
        e(f'{slow}:\ns_add_u32 s{STAMP0+7}, s{STAMP0+7}, 1')
        poll_fail(a, top, abort)
    cold.fns.append(f)

def advance(a):
    a.e(f's_add_u32 s{sMemRd}, s{sMemRd}, 8192\ns_add_u32 s{sStep}, s{sStep}, 1\ns_mov_b32 s{sPoll}, 0\ns_add_u32 s{sTch}, s{sTch}, s{sTchInc}')

def chain_role(a, prof=False, nlayers=2, dump=None, timing=False, pre_start=None, **kn):
    e = a.e
    KN.clear(); KN.update(kn)
    W = f's[{WS}:{WS+3}]'
    P = Prof(a, prof)
    P.raw = kn.get('raw')
    cold = Cold()
    def PS(n):
        if prof: e(f'{TM()} s[{STAMP0+8+2*(NCOMMON+n)}:{STAMP0+9+2*(NCOMMON+n)}]')
    abort, fin = a.label('Labort'), a.label('Lfin')
    if dump: P.dump = (dump[0], dump[1], abort)
    lane_consts(a)
    init_exchange(a)
    load_weights(a)
    if pre_start: pre_start(abort)
    e('s_waitcnt vmcnt(0)\ns_barrier')
    srd(a, SW, KA_DBG, 256)
    top, ok, skip = a.label('Lrv'), a.label('Lrv'), a.label('Lrv')
    e(f'v_mov_b32 v{T1}, 1\ns_cmp_lg_u32 s{sWv}, 0\ns_cbranch_scc1 {skip}')
    e(f's_mov_b64 exec, 1\nbuffer_atomic_add v{T1}, off, s[{SW}:{SW+3}], 0 sc1\ns_mov_b64 exec, -1')
    e(f'{skip}:\ns_mov_b32 s{sPoll}, 0')
    e(f'{top}:\nbuffer_load_dword v{T1}, off, s[{SW}:{SW+3}], 0 sc1\ns_waitcnt vmcnt(0)\nv_readfirstlane_b32 s{sTmp}, v{T1}\ns_cmp_ge_u32 s{sTmp}, 32\ns_cbranch_scc1 {ok}\ns_sleep 2')
    poll_fail(a, top, abort, 256)
    e(f'{ok}:')
    e(f's_mov_b32 s{sTag}, 0\ns_mov_b32 s{sTot}, 0\ns_mov_b32 s{sFl}, 0\ns_mov_b32 s{sSeenA}, 0\ns_mov_b32 s{sSeenB}, 0\ns_mov_b32 s{sSeg}, 0\ns_mov_b32 s{sMemRd}, {MEMX}\ns_mov_b32 s{sKM}, 0')
    hint_consts(a)
    e(f's_mov_b32 s{sVM}, s{sTmp3}\ns_lshl_b32 s{sVMI}, s{sWv}, 9\ns_add_u32 s{sVMI}, s{sVMI}, {L_VMI - L_HI//2}')
    e(f's_mov_b32 s{STAMP0+5}, 0\ns_mov_b32 s{STAMP0+6}, 0\ns_mov_b32 s{STAMP0+7}, 0')
    lay, loop, lb4, lastl = [a.label(x) for x in ('Llay', 'Lstep', 'Lb4', 'Llast')]
    if timing: e('s_memrealtime s[12:13]\ns_memtime s[14:15]\ns_waitcnt lgkmcnt(0)')
    e(f'{lay}:')
    P.init()
    e(f's_mov_b32 s{sStep}, 0')
    kv_check(a, cold, abort)
    dmak(a)
    for x in dma_ops(a): e(x)
    win_prefetch(a); acc_clear(a)
    t2, s2 = hop2(a, cold, abort, True)
    hop2_finish(a, cold, abort, t2, s2)
    e(f's_branch {loop}')
    e(f'{lb4}:')
    PS(0)
    e(f's_xor_b32 s{sTag}, s{sTag}, 1')
    acc_clear(a)
    t2, s2 = hop2(a, cold, abort, False)
    PS(1)
    hop2_finish(a, cold, abort, t2, s2)
    PS(2)
    P.collect(3)
    a.lines.append(f'{loop}:'); a.hist = []
    e('s_waitcnt lgkmcnt(0)')
    P.stamp('top')
    e(f's_barrier\ns_add_u32 s{sExp}, s{sExp}, 1\ns_cmp_eq_u32 s{sStep}, 63\ns_cbranch_scc1 {lastl}')
    step_body(a, P, False, cold, abort)
    win_prefetch(a)
    advance(a)
    e(f's_cmp_ge_u32 s{sWv}, 2\ns_cbranch_scc1 {lb4}')
    hop1(a, cold, abort)
    e(f's_branch {lb4}')
    e(f'{lastl}:')
    step_body(a, Prof(a, False), True, cold, abort)
    advance(a)
    a.reset_q()
    publish_read(a)
    e('s_waitcnt lgkmcnt(0)')
    for x in publish_ops(): e(x)
    e(f's_sub_u32 s{sKM}, s{sKM}, 65536\ns_sub_u32 s{sVM}, s{sVM}, 65536\ns_mov_b32 s{sFl}, s{sTot}\nv_mov_b32 v{T0}, s{sTot}')
    e(f's_waitcnt vmcnt(0)\ns_barrier\nbuffer_store_dword v{T0}, off, {W}, s{sFlg} sc1')
    e(f's_cmp_lt_u32 s{sMemRd}, {MEMX + 64*8192*nlayers}\ns_cbranch_scc1 {lay}')
    e(f's_branch {fin}')
    for f in cold.fns: f()
    e(f'{abort}:')
    e(f'{fin}:')
    e('buffer_wbl2 sc1\ns_waitcnt vmcnt(0)')
    return P
```

```python
WS_SIZE = 0x10000000
FLAGS = 0x0
PART  = 0x10000
MEMX  = 0x100000
KM    = 0x210000
VM    = 0xA20000
X1    = 0x1300000
X2    = 0x1500000
X3    = 0x1700000
PQ    = 0x1900000
KVZ   = 0x1D00000
KX    = 0x2000000
VX    = 0x4000000
OX    = 0x6000000
OOB   = 0x80000000
F_KM  = 0
F_KV  = 32
F_O   = 96
F_X2  = 224
F_A1  = 288
F_X1  = 290
NFLAG = 418
D_RV, D_TICK, D_ARR, D_OVF, D_INIT = 0, 2, 10, 11, 12
KA_AX, KA_AWQKV, KA_AWO, KA_BX, KA_MEM0, KA_WQ, KA_WK, KA_WV, KA_WO, KA_SEG, KA_OUT, KA_DBG, KA_WS = [8 * i for i in range(13)]
```

```python
from asmlib import *
from layout import *
from chain import srd, WS, sH, sWv, sTmp, sTmp2, sPoll, Cold
import struct, math

W = f's[{WS}:{WS+3}]'
SA, SB = 8, 12
sRep, sSeg, sEnd, sStride, sLay, sBuf, sNeed, sT3, sT4, sEps, sL2e, sXoff, sPass, sInv, sLnEps = range(46, 61)
f32 = lambda x: struct.unpack('<I', struct.pack('<f', x))[0]
mf32 = lambda a, D, A, B, C: a.e(f'v_mfma_f32_32x32x16_bf16 {D}, {A}, {B}, {C}')

def wait_flag(a, abort, off, need, vt, sleep=1):
    e = a.e
    top, ok = a.label('Lwf'), a.label('Lwf')
    e(f's_mov_b32 s{sPoll}, 0\n{top}:')
    e(f'buffer_load_dword v{vt}, off, {W}, s{off} sc1\ns_waitcnt vmcnt(0)\nv_readfirstlane_b32 s{sTmp}, v{vt}')
    e(f's_cmp_ge_u32 s{sTmp}, s{need}\ns_cbranch_scc1 {ok}\ns_sleep {sleep}\ns_add_u32 s{sPoll}, s{sPoll}, 1\ns_cmp_lt_u32 s{sPoll}, 0x40000\ns_cbranch_scc1 {top}\ns_branch {abort}')
    e(f'{ok}:')

def wait_init(a, abort, vt=10):
    e = a.e
    srd(a, SB, KA_DBG, 256)
    top, ok = a.label('Lwi'), a.label('Lwi')
    e(f's_mov_b32 s{sPoll}, 0\n{top}:')
    e(f'buffer_load_dword v{vt}, off, s[{SB}:{SB+3}], 0 offset:{D_INIT*4} sc1\ns_waitcnt vmcnt(0)\nv_readfirstlane_b32 s{sTmp}, v{vt}')
    e(f's_cmp_ge_u32 s{sTmp}, 4\ns_cbranch_scc1 {ok}\ns_sleep 2\ns_add_u32 s{sPoll}, s{sPoll}, 1\ns_cmp_lt_u32 s{sPoll}, 0x40000\ns_cbranch_scc1 {top}\ns_branch {abort}')
    e(f'{ok}:')

def signal_add(a, off, vt, wg=True):
    e = a.e
    e('s_waitcnt vmcnt(0)')
    skip = a.label('Lsg')
    if wg: e(f's_barrier\ns_cmp_lg_u32 s{sWv}, 0\ns_cbranch_scc1 {skip}')
    e(f'v_mov_b32 v{vt}, 1\ns_mov_b64 exec, 1\nbuffer_atomic_add v{vt}, off, {W}, s{off} sc1\ns_mov_b64 exec, -1')
    if wg: e(f'{skip}:')

LN, L16, TOK, HI, U4 = 0, 1, 2, 3, 4
def lane_init(a):
    a.e(f'v_lshlrev_b32 v{L16}, 4, v0\nv_and_b32 v{TOK}, 31, v0\nv_lshrrev_b32 v{HI}, 5, v0\nv_bfe_u32 v{U4}, v0, 2, 2')
    a.e(f's_mov_b32 s{sEps}, {f32(1e-6):#x}\ns_mov_b32 s{sL2e}, {f32(math.log2(math.e)):#x}\ns_mov_b32 s{sInv}, {f32(1/512):#x}\ns_mov_b32 s{sLnEps}, {f32(1e-5):#x}')

def load_w64(a, srd0, srd1, sOff0, sOff1, rowstride, natural, ntile=2, nrows=512, dst=0):
    e = a.e
    rb = 64 * ntile
    rpi = 1024 // rb
    rps = 8192 // rb
    nslab = nrows // rps
    same = srd0 == srd1
    if ntile == 2:
        e('v_lshrrev_b32 v10, 3, v0\nv_and_b32 v11, 7, v0\nv_bfe_u32 v12, v0, 4, 1\nv_lshlrev_b32 v12, 2, v12\nv_xor_b32 v11, v11, v12')
        e(f's_mov_b32 s{sTmp}, {rowstride}\nv_mul_lo_u32 v10, v10, s{sTmp}\nv_and_b32 v12, 3, v11\nv_lshl_add_u32 v10, v12, 4, v10')
        e(f's_sub_u32 s{sTmp}, s{sOff1}, s{sOff0}\nv_lshrrev_b32 v12, 2, v11\nv_mul_lo_u32 v12, v12, s{sTmp}\nv_add_u32 v10, v10, v12')
        assert same
    else:
        e(f'v_lshrrev_b32 v10, 2, v0\ns_mov_b32 s{sTmp}, {rowstride}\nv_mul_lo_u32 v10, v10, s{sTmp}\nv_and_b32 v12, 3, v0\nv_lshl_add_u32 v10, v12, 4, v10')
    e(f'v_lshl_add_u32 v13, v{HI}, {3 if natural else 2}, v{U4}\nv_mul_u32_u24 v13, {rb}, v13\nv_bfe_u32 v12, v0, 4, 1\nv_lshl_add_u32 v13, v12, 5, v13\nv_and_b32 v12, 3, v0\nv_lshl_add_u32 v13, v12, 3, v13')
    e(f's_lshl_b32 s{sT3}, s{sWv}, 15\nv_add_u32 v13, s{sT3}, v13')
    if ntile == 2: e('v_bfe_u32 v12, v0, 3, 1\nv_lshlrev_b32 v12, 6, v12\nv_xor_b32 v13, v13, v12\nv_xor_b32 v14, 64, v13')
    def dma(i):
        for j in range(8):
            e(f's_add_u32 m0, s{sT3}, {(i % 4) * 8192 + j * 1024}\ns_add_u32 s{sT4}, s{sOff0}, {(i * rps + j * rpi) * rowstride}')
            e(f'buffer_load_dwordx4 v10, s[{srd0}:{srd0+3}], s{sT4} offen lds', tag=('w', i))
    e('s_waitcnt vmcnt(0) lgkmcnt(0)'); a.reset_q()
    for i in range(min(4, nslab)): dma(i)
    astep = (4 if natural else 8) * rb
    for i in range(nslab):
        a.wait_vm(('w', i))
        for cc in range(rps // 16):
            c = i * (rps // 16) + cc
            for t in range(ntile):
                for p in range(2):
                    d = dst + (c * ntile + t) * 4 + 2 * p
                    e(f'ds_read_b64_tr_b16 a[{d}:{d+1}], v{13+t} offset:{(i % 4) * 8192 + cc * 16 * rb + p * astep}')
        e('s_waitcnt lgkmcnt(0)')
        if i + 4 < nslab: dma(i + 4)

ACC = 16
WSUM = 48
FR = 80
ST0, ST1 = 96, 97
ONE4 = 100
RS = 104
ARD, ASRC, STW, STR = 5, 6, 7, 8
L_A = 0
ATILE = 33280
L_ST = 2 * ATILE + 1024

def gemm_consts(a, rowmajor):
    e = a.e
    for q in range(4): e(f'v_mov_b32 v{ONE4+q}, 0x3f803f80')
    if rowmajor: e(f'v_mul_u32_u24 v{ARD}, 1040, v{TOK}\nv_lshl_add_u32 v{ARD}, v{HI}, 4, v{ARD}')
    else: e(f'v_mov_b32 v{ARD}, v{L16}')
    e(f's_lshl_b32 s{sTmp}, s{sWv}, 13\nv_add_u32 v{ASRC}, s{sTmp}, v{L16}')
    e(f's_lshl_b32 s{sTmp}, s{sWv}, 8\ns_add_u32 s{sTmp}, s{sTmp}, {L_ST}\nv_lshlrev_b32 v{STW}, 2, v{TOK}\nv_add_u32 v{STW}, s{sTmp}, v{STW}\nv_lshlrev_b32 v{STR}, 4, v{HI}\nv_add_u32 v{STR}, s{sTmp}, v{STR}')

def wsum_init(a, ct, ntile=2):
    for c in range(32):
        for t in range(ntile):
            Wf, D = ar((c * ntile + t) * 4, 4), vr(WSUM + 16 * t, 16)
            A, B = (Wf, vr(ONE4, 4)) if ct else (vr(ONE4, 4), Wf)
            mf32(a, D, A, B, '0' if c == 0 else D)

def atile_dma(a, srdn, rowmajor):
    e = a.e
    st = 1040 if rowmajor else 1024
    e(f's_mul_i32 s{sT3}, s{sWv}, {8*st}\ns_add_u32 s{sT3}, s{sT3}, s{sBuf}')
    for j in range(8):
        e(f's_add_u32 m0, s{sT3}, {L_A + j*st}\ns_add_u32 s{sT4}, s{sXoff}, {j*1024}')
        e(f'buffer_load_dwordx4 v{ASRC}, s[{srdn}:{srdn+3}], s{sT4} offen sc1 lds')

def gemm_main(a, ct, rowmajor, ntile=2, stats=True):
    e = a.e
    cs = 32 if rowmajor else 1024
    e(f'v_add_u32 v9, s{sBuf}, v{ARD}')
    a.reset_q()
    rd = lambda c: e(f'ds_read_b128 v[{FR+4*(c%4)}:{FR+4*(c%4)+3}], v9 offset:{L_A + c*cs}', tag=('x', c))
    for c in range(3): rd(c)
    if stats: e(f'v_mov_b32 v{ST0}, 0\nv_mov_b32 v{ST1}, 0')
    for c in range(32):
        a.wait_ds(('x', c))
        X = FR + 4 * (c % 4)
        for t in range(ntile):
            Wf, D = ar((c * ntile + t) * 4, 4), vr(ACC + 16 * t, 16)
            A, B = (Wf, vr(X, 4)) if ct else (vr(X, 4), Wf)
            mf32(a, D, A, B, '0' if c == 0 else D)
            if t == 0 and c + 3 < 32: rd(c + 3)
            if stats:
                for k in range(2 * t, 2 * t + 2) if ntile == 2 else range(4):
                    e(f'v_dot2c_f32_bf16 v{ST0}, v{X+k}, v{ONE4}\nv_dot2c_f32_bf16 v{ST1}, v{X+k}, v{X+k}')

def ln_stats(a, extra_scale=None):
    e = a.e
    e(f'v_mov_b32 v10, v{ST0}\nv_mov_b32 v11, v{ST1}\nv_permlane32_swap_b32 v{ST0}, v10\nv_permlane32_swap_b32 v{ST1}, v11')
    e(f'v_add_f32 v{ST0}, v{ST0}, v10\nv_add_f32 v{ST1}, v{ST1}, v11\nv_mul_f32 v{ST0}, s{sInv}, v{ST0}\nv_mul_f32 v{ST1}, s{sInv}, v{ST1}')
    e(f'v_fma_f32 v{ST1}, -v{ST0}, v{ST0}, v{ST1}\nv_max_f32 v{ST1}, 0, v{ST1}\nv_add_f32 v{ST1}, s{sLnEps}, v{ST1}\nv_rsq_f32 v{ST1}, v{ST1}')
    if extra_scale is not None: e(f'v_mul_f32 v{ST1}, {f32(extra_scale):#x}, v{ST1}')
    e(f'v_mul_f32 v{ST0}, v{ST0}, v{ST1}')

def ln_apply(a, ct, acc, wsum, nreg):
    e = a.e
    if ct:
        for r in range(nreg): e(f'v_mul_f32 v10, v{ST0}, v{wsum+r}\nv_fma_f32 v{acc+r}, v{acc+r}, v{ST1}, -v10')
    else:
        e(f'ds_write2_b32 v{STW}, v{ST0}, v{ST1} offset0:0 offset1:32\ns_waitcnt lgkmcnt(0)')
        for q in range(4): e(f'ds_read_b128 v[{RS+4*q}:{RS+4*q+3}], v{STR} offset:{q*32}\nds_read_b128 v[{RS+16+4*q}:{RS+19+4*q}], v{STR} offset:{128+q*32}')
        e('s_waitcnt lgkmcnt(0)')
        for r in range(nreg): e(f'v_mul_f32 v10, v{RS+r%16}, v{wsum+(r//16)*16}\nv_fma_f32 v{acc+r}, v{acc+r}, v{RS+16+r%16}, -v10')

def pack(a, src, dst, n):
    for i in range(n // 2): a.e(f'v_cvt_pk_bf16_f32 v{dst+i}, v{src+2*i}, v{src+2*i+1}')

def phi(a, r):
    a.e(f'v_mul_f32 v10, s{sL2e}, v{r}\nv_min_f32 v10, 0, v10\nv_exp_f32 v10, v10\nv_add_f32 v{r}, s{sEps}, v{r}\nv_max_f32 v{r}, s{sEps}, v{r}\nv_add_f32 v{r}, v{r}, v10')

def rne(a, r, n):
    for i in range(0, n, 2):
        a.e(f'v_cvt_pk_bf16_f32 v10, v{r+i}, v{r+i+1}\nv_lshlrev_b32 v{r+i}, 16, v10\nv_and_b32 v{r+i+1}, 0xffff0000, v10')

def seg_loop(a, abort, wait_fn, xoff_fn, srdn, rowmajor, body):
    e = a.e
    top, done = a.label('Lsl'), a.label('Lsd')
    e(f's_mov_b32 s{sBuf}, 0\n{top}:')
    e(f's_cmp_ge_u32 s{sSeg}, s{sEnd}\ns_cbranch_scc1 {done}')
    wait_fn()
    xoff_fn()
    atile_dma(a, srdn, rowmajor)
    e('s_waitcnt vmcnt(0)\ns_barrier')
    body()
    e(f's_xor_b32 s{sBuf}, s{sBuf}, {ATILE}\ns_add_u32 s{sSeg}, s{sSeg}, s{sStride}\ns_branch {top}')
    e(f'{done}:')

def x_tpl_off(a):
    a.e(f's_lshl_b32 s{sXoff}, s{sSeg}, 15\ns_cmp_ge_u32 s{sSeg}, 64\ns_cselect_b32 s{sTmp}, {X3 - X1 - 64*32768}, 0\ns_add_u32 s{sXoff}, s{sXoff}, s{sTmp}\ns_add_u32 s{sXoff}, s{sXoff}, {X1}')

def wait_x1(a, abort):
    a.e(f's_lshl_b32 s{sT3}, s{sSeg}, 7\ns_add_u32 s{sT3}, s{sT3}, {FLAGS + F_X1*128}\ns_mov_b32 s{sNeed}, 4')
    wait_flag(a, abort, sT3, sNeed, 10)

def kv_role(a, abort):
    e = a.e
    lane_init(a); gemm_consts(a, False)
    lv, lj = a.label('Lkv'), a.label('Lkv')
    srd(a, SA, KA_WK, 4194304); srd(a, SB, KA_WV, 4194304)
    e(f's_cmp_lt_u32 s{sWv}, 2\ns_cselect_b32 s{SA}, s{SA}, s{SB}\ns_cselect_b32 s{SA+1}, s{SA+1}, s{SB+1}')
    e(f's_lshl_b32 s{sXoff}, s{sH}, 8\ns_and_b32 s{sTmp}, s{sWv}, 1\ns_lshl_b32 s{sTmp}, s{sTmp}, 7\ns_add_u32 s{sXoff}, s{sXoff}, s{sTmp}\ns_add_u32 s{sNeed}, s{sXoff}, 64')
    load_w64(a, SA, SA, sXoff, sNeed, 8192, False)
    wait_init(a, abort)
    e(f's_barrier\ns_mov_b32 s{sSeg}, s{sRep}\ns_mov_b32 s{sEnd}, 128\ns_mov_b32 s{sStride}, 2')
    e(f's_lshl_b32 s{sTmp}, s{sH}, 13\ns_and_b32 s{sTmp2}, s{sWv}, 1\ns_lshl_b32 s{sTmp2}, s{sTmp2}, 12\ns_add_u32 s{sTmp}, s{sTmp}, s{sTmp2}\nv_add_u32 v98, s{sTmp}, v{L16}')
    e(f's_cmp_ge_u32 s{sWv}, 2\ns_cbranch_scc1 {lv}')
    for ct, base in ((True, KX), (False, VX)):
        if not ct: e(f'{lv}:')
        wsum_init(a, ct)
        def body():
            gemm_main(a, ct, False)
            ln_stats(a); ln_apply(a, ct, ACC, WSUM, 32)
            pack(a, ACC, RS, 32)
            e(f's_lshl_b32 s{sT3}, s{sSeg}, 18\ns_add_u32 s{sT3}, s{sT3}, {base}')
            for k in range(4): e(f'buffer_store_dwordx4 v[{RS+4*k}:{RS+4*k+3}], v98, {W}, s{sT3} offen offset:{k*1024} sc1')
            e(f's_lshl_b32 s{sT3}, s{sH}, 1\ns_add_u32 s{sT3}, s{sT3}, s{sRep}\ns_lshl_b32 s{sT3}, s{sT3}, 7\ns_add_u32 s{sT3}, s{sT3}, {FLAGS + F_KV*128}')
            signal_add(a, sT3, 10)
        seg_loop(a, abort, lambda: wait_x1(a, abort), lambda: x_tpl_off(a), WS, False, body)
        e(f's_branch {lj}')
    e(f'{lj}:')

KVA, ZA = 136, 152
def a1_weights(a, abort):
    e = a.e
    lane_init(a); gemm_consts(a, True)
    srd(a, SA, KA_AWQKV, 512 * 3072)
    e(f's_lshl_b32 s{sXoff}, s{sH}, 9\ns_lshl_b32 s{sTmp}, s{sWv}, 7\ns_add_u32 s{sXoff}, s{sXoff}, s{sTmp}\ns_add_u32 s{sNeed}, s{sXoff}, 64')
    e(f's_lshl_b32 s{sT3}, s{sH}, 8\ns_lshl_b32 s{sTmp}, s{sWv}, 6\ns_add_u32 s{sT3}, s{sT3}, s{sTmp}\ns_add_u32 s{sT3}, s{sT3}, 512\ns_add_u32 s{sT4}, s{sT3}, 1024')
    e(f's_cmp_lt_u32 s{sH}, 2\ns_cselect_b32 s{sXoff}, s{sXoff}, s{sT3}\ns_cselect_b32 s{sNeed}, s{sNeed}, s{sT4}')
    load_w64(a, SA, SA, sXoff, sNeed, 3072, True)
    wait_init(a, abort)
    e('s_barrier')

def a1_pass(a, abort, layer):
    e = a.e
    lkv, lj = a.label('La1'), a.label('La1')
    if layer == 0: srd(a, SB, KA_AX, 2097152)
    e(f's_mov_b32 s{sEnd}, 64')
    def wait():
        if layer:
            e(f's_lshl_b32 s{sT3}, s{sSeg}, 7\ns_add_u32 s{sT3}, s{sT3}, {FLAGS + F_X2*128}\ns_mov_b32 s{sNeed}, 16')
            wait_flag(a, abort, sT3, sNeed, 10)
    def xoff():
        e(f's_lshl_b32 s{sXoff}, s{sSeg}, 15')
        if layer: e(f's_add_u32 s{sXoff}, s{sXoff}, {X2}')
    src = WS if layer else SB
    e(f's_cmp_ge_u32 s{sH}, 2\ns_cbranch_scc1 {lkv}')
    wsum_init(a, True)
    e(f's_lshl_b32 s{sTmp}, s{sH}, 14\ns_lshl_b32 s{sTmp2}, s{sWv}, 12\ns_add_u32 s{sTmp}, s{sTmp}, s{sTmp2}\nv_add_u32 v98, s{sTmp}, v{L16}')
    def body_q():
        gemm_main(a, True, True)
        ln_stats(a); ln_apply(a, True, ACC, WSUM, 32)
        rne(a, ACC, 32)
        for r in range(32): phi(a, ACC + r)
        pack(a, ACC, RS, 32)
        e(f's_lshl_b32 s{sT3}, s{sSeg}, 15\ns_add_u32 s{sT3}, s{sT3}, {PQ + layer*0x200000}')
        for k in range(4): e(f'buffer_store_dwordx4 v[{RS+4*k}:{RS+4*k+3}], v98, {W}, s{sT3} offen offset:{k*1024} sc1')
    seg_loop(a, abort, wait, xoff, src, True, body_q)
    e(f's_branch {lj}')
    e(f'{lkv}:')
    wsum_init(a, False)
    for r in range(KVA, ZA + 16, 2): e(f'v_mov_b64 v[{r}:{r+1}], 0')
    def body_kv():
        gemm_main(a, False, True)
        ln_stats(a); ln_apply(a, False, ACC, WSUM, 32)
        rne(a, ACC, 16)
        for r in range(16): phi(a, ACC + r)
        pack(a, ACC, RS, 32)
        for ch in range(2):
            mf32(a, vr(KVA, 16), vr(RS + 4 * ch, 4), vr(RS + 8 + 4 * ch, 4), vr(KVA, 16))
            mf32(a, vr(ZA, 16), vr(RS + 4 * ch, 4), vr(ONE4, 4), vr(ZA, 16))
    seg_loop(a, abort, wait, xoff, src, True, body_kv)
    e(f's_lshl_b32 s{sTmp}, s{sH}, 14\ns_lshl_b32 s{sTmp2}, s{sWv}, 12\ns_add_u32 s{sT3}, s{sTmp}, s{sTmp2}\ns_add_u32 s{sT3}, s{sT3}, {KVZ + layer*65536 - 32768}')
    e(f'v_bfe_u32 v11, v0, 4, 1\nv_lshlrev_b32 v12, 11, v11\nv_lshl_add_u32 v12, v{HI}, 7, v12\nv_and_b32 v13, 15, v0\nv_lshl_add_u32 v14, v13, 2, v12')
    e(f'v_add_u32 v12, 64, v12\nv_mov_b32 v15, {OOB:#x}\nv_cmp_eq_u32 vcc, 0, v13\nv_cndmask_b32 v12, v15, v12, vcc\nv_cmp_eq_u32 vcc, 1, v11')
    for j in range(8):
        e(f'v_cndmask_b32 v{RS+j}, v{KVA+j}, v{KVA+8+j}, vcc\nv_cndmask_b32 v{RS+8+j}, v{ZA+j}, v{ZA+8+j}, vcc')
    for j in range(8):
        e(f'buffer_atomic_add_f32 v{RS+j}, v14, {W}, s{sT3} offen offset:{j*256}\nbuffer_atomic_add_f32 v{RS+8+j}, v12, {W}, s{sT3} offen offset:{j*256}')
    e(f'{lj}:')
    e(f's_mov_b32 s{sT3}, {FLAGS + (F_A1 + layer)*128}')
    signal_add(a, sT3, 10)

KZ = 128
def a2_role(a, abort, nrep, n_a1):
    e = a.e
    lane_init(a); gemm_consts(a, False)
    srd(a, SA, KA_AWO, 512 * 1024)
    e(f's_lshl_b32 s{sXoff}, s{sH}, 8\ns_lshl_b32 s{sTmp}, s{sWv}, 6\ns_add_u32 s{sXoff}, s{sXoff}, s{sTmp}')
    load_w64(a, SA, SA, sXoff, sXoff, 1024, False, ntile=1)
    e('s_barrier')
    wait_init(a, abort)
    srd(a, SB, KA_AX, 2097152)
    e(f'v_lshlrev_b32 v98, 10, v{TOK}\nv_lshl_add_u32 v98, v{HI}, 3, v98\nv_add_u32 v98, s{sXoff}, v98')
    e(f's_lshl_b32 s{sTmp}, s{sXoff}, 5\nv_add_u32 v99, s{sTmp}, v{L16}')
    for layer in range(2):
        e(f's_mov_b32 s{sT3}, {FLAGS + (F_A1 + layer)*128}\ns_mov_b32 s{sNeed}, {n_a1[layer]}')
        wait_flag(a, abort, sT3, sNeed, 10)
        e(f'v_min_u32 v11, 16, v{TOK}\nv_lshl_add_u32 v11, v{HI}, 5, v11\nv_lshlrev_b32 v11, 2, v11\ns_lshl_b32 s{sT3}, s{sWv}, 14\ns_add_u32 s{sT3}, s{sT3}, {KVZ + layer*65536}')
        for hd in range(8):
            e(f's_add_u32 s{sT4}, s{sT3}, {hd*2048}')
            for j in range(8): e(f'buffer_load_dword v{160+8*hd+j}, v11, {W}, s{sT4} offen offset:{j*256} sc1')
            if hd % 4 == 3: e('s_waitcnt vmcnt(0)')
        pack(a, 160, KZ, 64)
        e(f's_mov_b32 s{sSeg}, s{sRep}')
        top, done = a.label('La2'), a.label('La2')
        e(f'{top}:\ns_cmp_ge_u32 s{sSeg}, 64\ns_cbranch_scc1 {done}')
        e(f's_lshl_b32 s{sXoff}, s{sSeg}, 15\ns_add_u32 s{sT3}, s{sXoff}, {PQ + layer*0x200000}\ns_add_u32 s{sT4}, s{sT3}, 4096')
        for hd in range(8): e(f'buffer_load_dwordx4 v[{160+4*hd}:{163+4*hd}], v{ASRC}, {W}, s{sT3 if hd < 4 else sT4} offen offset:{(hd%4)*1024} sc1')
        if layer: e(f's_add_u32 s{sT3}, s{sXoff}, {X2}')
        for q in range(4):
            if layer: e(f'buffer_load_dwordx2 v[{RS+2*q}:{RS+2*q+1}], v98, {W}, s{sT3} offen offset:{q*16} sc1')
            else: e(f'buffer_load_dwordx2 v[{RS+2*q}:{RS+2*q+1}], v98, s[{SB}:{SB+3}], s{sXoff} offen offset:{q*16}')
        for hd in range(8):
            D = 192 + 16 * (hd % 4)
            e(f's_waitcnt vmcnt({11-hd})')
            mf32(a, vr(D, 16), vr(KZ + 4 * hd, 4), vr(160 + 4 * hd, 4), '0')
            if hd % 4 == 3:
                for k in range(4):
                    D = 192 + 16 * k
                    e(f'v_add_f32 v10, s{sEps}, v{D+8}\nv_rcp_f32 v10, v10')
                    for i in range(8): e(f'v_mul_f32 v{D+i}, v{D+i}, v10')
                    pack(a, D, D + 8, 8)
                    e(f'ds_write_b128 v{ASRC}, v[{D+8}:{D+11}] offset:{L_A + (hd - 3 + k)*1024}')
        e(f's_waitcnt lgkmcnt(0)\ns_barrier\ns_mov_b32 s{sBuf}, 0')
        gemm_main(a, True, False, ntile=1, stats=False)
        e('s_waitcnt vmcnt(0)')
        for q in range(4):
            for k in range(2):
                e(f'v_lshlrev_b32 v10, 16, v{RS+2*q+k}\nv_and_b32 v11, 0xffff0000, v{RS+2*q+k}\nv_add_f32 v{ACC+4*q+2*k}, v{ACC+4*q+2*k}, v10\nv_add_f32 v{ACC+4*q+2*k+1}, v{ACC+4*q+2*k+1}, v11')
        pack(a, ACC, RS + 8, 16)
        e(f's_add_u32 s{sT3}, s{sXoff}, {X3 if layer else X1}')
        for k in range(2): e(f'buffer_store_dwordx4 v[{RS+8+4*k}:{RS+11+4*k}], v99, {W}, s{sT3} offen offset:{k*1024} sc1')
        e(f's_lshl_b32 s{sT3}, s{sSeg}, 7\ns_add_u32 s{sT3}, s{sT3}, {FLAGS + (F_X1 + 64*layer)*128}')
        signal_add(a, sT3, 10)
        e(f's_add_u32 s{sSeg}, s{sSeg}, {nrep}\ns_branch {top}\n{done}:')

def wo_role(a, abort, nrep):
    e = a.e
    lane_init(a)
    srd(a, SA, KA_WO, 4194304)
    e(f's_lshl_b32 s{sXoff}, s{sWv}, 20\ns_lshl_b32 s{sTmp}, s{sH}, 6\ns_add_u32 s{sXoff}, s{sXoff}, s{sTmp}')
    load_w64(a, SA, SA, sXoff, sXoff, 1024, False, ntile=1, nrows=1024)
    wait_init(a, abort)
    srd(a, SB, KA_OUT, 2097152)
    e('s_barrier')
    e(f's_lshl_b32 s{sTmp}, s{sWv}, 16\nv_add_u32 v5, s{sTmp}, v{L16}\ns_lshl_b32 s{sTmp}, s{sWv}, 12\nv_add_u32 v6, s{sTmp}, v{L16}\ns_lshl_b32 s{sTmp}, s{sWv}, 10\nv_add_u32 v7, s{sTmp}, v{L16}')
    e(f's_lshl_b32 s{sTmp}, s{sH}, 11\ns_lshr_b32 s{sTmp2}, s{sWv}, 1\ns_lshl_b32 s{sTmp2}, s{sTmp2}, 10\ns_add_u32 s{sTmp}, s{sTmp}, s{sTmp2}\ns_and_b32 s{sTmp2}, s{sWv}, 1\ns_lshl_b32 s{sTmp2}, s{sTmp2}, 3\ns_add_u32 s{sTmp}, s{sTmp}, s{sTmp2}\nv_add_u32 v8, s{sTmp}, v{L16}')
    e(f's_lshl_b32 s{sTmp}, s{sH}, 6\ns_lshl_b32 s{sTmp2}, s{sWv}, 4\ns_add_u32 s{sTmp}, s{sTmp}, s{sTmp2}\nv_lshlrev_b32 v9, 10, v{TOK}\nv_lshl_add_u32 v9, v{HI}, 3, v9\nv_add_u32 v9, s{sTmp}, v9')
    e(f's_mov_b32 s{sSeg}, s{sRep}')
    top, done, l2, lj = [a.label('Lwo') for _ in range(4)]
    e(f'{top}:\ns_cmp_ge_u32 s{sSeg}, 128\ns_cbranch_scc1 {done}')
    e(f's_lshl_b32 s{sT3}, s{sSeg}, 7\ns_add_u32 s{sT3}, s{sT3}, {FLAGS + F_O*128}\ns_mov_b32 s{sNeed}, 32')
    wait_flag(a, abort, sT3, sNeed, 10)
    x_tpl_off(a)
    e(f'buffer_load_dwordx2 v[12:13], v8, {W}, s{sXoff} offen sc1')
    e(f's_lshl_b32 s{sT3}, s{sSeg}, 18\ns_add_u32 s{sT3}, s{sT3}, {OX}')
    NB = 48
    a.reset_q()
    def ld(c):
        if c % 4 == 0: e(f's_add_u32 s{sT4}, s{sT3}, {c*1024}')
        b = 64 + 4 * (c % NB)
        e(f'buffer_load_dwordx4 v[{b}:{b+3}], v5, {W}, s{sT4} offen offset:{(c%4)*1024} sc1', tag=('o', c))
    for c in range(NB): ld(c)
    for c in range(64):
        a.wait_vm(('o', c))
        D = vr(16 + 16 * (c & 1), 16)
        mf32(a, D, ar(4 * c, 4), vr(64 + 4 * (c % NB), 4), '0' if c < 2 else D)
        if c + NB < 64: ld(c + NB)
    for r in range(16): e(f'v_add_f32 v{16+r}, v{16+r}, v{32+r}')
    for q in range(4): e(f'ds_write_b128 v6, v[{16+4*q}:{19+4*q}] offset:{q*1024}')
    e('s_waitcnt lgkmcnt(0)\ns_barrier')
    for k in range(4): e(f'ds_read_b128 v[{32+4*k}:{35+4*k}], v7 offset:{k*4096}')
    e('v_lshlrev_b32 v16, 16, v12\nv_and_b32 v17, 0xffff0000, v12\nv_lshlrev_b32 v18, 16, v13\nv_and_b32 v19, 0xffff0000, v13\ns_waitcnt lgkmcnt(0)')
    for i in range(4): e(f'v_add_f32 v{32+i}, v{32+i}, v{36+i}\nv_add_f32 v{40+i}, v{40+i}, v{44+i}\nv_add_f32 v{32+i}, v{32+i}, v{40+i}\nv_add_f32 v{16+i}, v{16+i}, v{32+i}')
    pack(a, 16, 20, 4)
    e(f's_and_b32 s{sT3}, s{sSeg}, 63\ns_lshl_b32 s{sT3}, s{sT3}, 15\ns_cmp_ge_u32 s{sSeg}, 64\ns_cbranch_scc1 {l2}')
    e(f's_add_u32 s{sT3}, s{sT3}, {X2}\nbuffer_store_dwordx2 v[20:21], v9, {W}, s{sT3} offen sc1')
    e(f's_lshl_b32 s{sT3}, s{sSeg}, 7\ns_add_u32 s{sT3}, s{sT3}, {FLAGS + F_X2*128}')
    signal_add(a, sT3, 10)
    e(f's_branch {lj}\n{l2}:\nbuffer_store_dwordx2 v[20:21], v9, s[{SB}:{SB+3}], s{sT3} offen\ns_barrier\n{lj}:')
    e(f's_add_u32 s{sSeg}, s{sSeg}, {nrep}\ns_branch {top}\n{done}:')

def qa_role(a, abort, nrep=1):
    e = a.e
    lane_init(a)
    srd(a, SA, KA_WQ, 4194304)
    XF, QA_, QW, WF, KF, VF, BI, S, SMm = 128, 0, 64, 16, 32, 64, 104, 16, 32
    for q in range(4): e(f'v_mov_b32 v{ONE4+q}, 0x3f803f80')
    e('v_lshrrev_b32 v10, 4, v0\nv_and_b32 v11, 15, v0\nv_lshlrev_b32 v12, 2, v10\nv_xor_b32 v11, v11, v12\nv_lshlrev_b32 v11, 4, v11\nv_lshl_add_u32 v10, v10, 13, v11')
    e(f's_lshl_b32 s{sT3}, s{sWv}, 15\ns_lshl_b32 s{sXoff}, s{sWv}, 20\ns_lshl_b32 s{sTmp}, s{sH}, 8\ns_add_u32 s{sXoff}, s{sXoff}, s{sTmp}')
    e('s_waitcnt vmcnt(0) lgkmcnt(0)'); a.reset_q()
    for j in range(32):
        e(f's_add_u32 m0, s{sT3}, {j*1024}\ns_add_u32 s{sT4}, s{sXoff}, {j*4*8192}\nbuffer_load_dwordx4 v10, s[{SA}:{SA+3}], s{sT4} offen lds', tag=('w', j // 4))
    e(f'v_lshl_add_u32 v13, v{HI}, 2, v{U4}\nv_lshlrev_b32 v13, 8, v13\nv_bfe_u32 v12, v0, 4, 1\nv_lshl_add_u32 v13, v12, 5, v13\nv_and_b32 v12, 3, v0\nv_lshl_add_u32 v13, v12, 3, v13\nv_lshl_add_u32 v13, v{U4}, 6, v13\nv_add_u32 v13, s{sT3}, v13')
    for t in range(1, 4): e(f'v_xor_b32 v{13+t}, {64*t}, v13')
    e(f'v_add_u32 v17, s{sT3}, v{L16}')
    for c in range(8):
        a.wait_vm(('w', c))
        for t in range(4):
            for p in range(2): e(f'ds_read_b64_tr_b16 v[{32+4*t+2*p}:{33+4*t+2*p}], v{13+t} offset:{c*4096 + p*2048}')
        e('s_waitcnt lgkmcnt(0)')
        for t in range(4): e(f'ds_write_b128 v17, v[{32+4*t}:{35+4*t}] offset:{c*4096 + t*1024}')
        e('s_waitcnt lgkmcnt(0)')
    e(f's_barrier\nv_add_u32 v5, 0x10000, v{L16}')
    wait_init(a, abort)
    def wrd(n, tag):
        e(f'ds_read_b128 v[{WF+4*(n%4)}:{WF+4*(n%4)+3}], v{L16 if n < 64 else 5} offset:{(n%64)*1024}', tag=tag)
    a.reset_q()
    for n in range(3): wrd(n, n)
    for n in range(128):
        a.wait_ds(n); D = ar(QW + 16 * (n % 4), 16)
        mf32(a, D, vr(WF + 4 * (n % 4), 4), vr(ONE4, 4), '0' if n < 4 else D)
        if n + 3 < 128: wrd(n + 3, n + 3)
    e(f'v_lshlrev_b32 v10, 2, v{HI}\nv_sub_u32 v10, v{TOK}, v10\nv_mov_b32 v11, 0\nv_mov_b32 v12, 0xff800000')
    for r in range(16): e(f'v_cmp_le_i32 vcc, {8*(r//4) + r%4}, v10\nv_cndmask_b32 v{BI+r}, v12, v11, vcc')
    e(f'v_lshlrev_b32 v7, 4, v{TOK}\nv_lshl_add_u32 v7, v{HI}, 7, v7\nv_mov_b32 v10, {OOB:#x}\nv_cmp_gt_u32 vcc, 8, v{TOK}\nv_cndmask_b32 v7, v10, v7, vcc')
    e(f'v_lshlrev_b32 v8, 4, v{TOK}\nv_lshl_add_u32 v8, v{HI}, 3, v8')
    e(f's_lshl_b32 s{sSeg}, s{sRep}, 2\ns_add_u32 s{sSeg}, s{sSeg}, s{sWv}')
    top, done = a.label('Lqa'), a.label('Lqa')
    e(f'{top}:\ns_cmp_ge_u32 s{sSeg}, 128\ns_cbranch_scc1 {done}')
    wait_x1(a, abort)
    x_tpl_off(a)
    a.reset_q()
    for c in range(32):
        if c % 4 == 0: e(f's_add_u32 s{sT4}, s{sXoff}, {c*1024}')
        e(f'buffer_load_dwordx4 v[{XF+4*c}:{XF+4*c+3}], v{L16}, {W}, s{sT4} offen offset:{(c%4)*1024} sc1', tag=('x', c))
    e(f'v_mov_b32 v{ST0}, 0\nv_mov_b32 v{ST1}, 0')
    for n in range(3): wrd(n, n)
    for n in range(128):
        c, t = n // 4, n % 4
        if t == 0: a.wait_vm(('x', c))
        a.wait_ds(n); D = ar(QA_ + 16 * t, 16)
        mf32(a, D, vr(WF + 4 * t, 4), vr(XF + 4 * c, 4), '0' if c == 0 else D)
        if n + 3 < 128: wrd(n + 3, n + 3)
        e(f'v_dot2c_f32_bf16 v{ST0}, v{XF+n}, v{ONE4}\nv_dot2c_f32_bf16 v{ST1}, v{XF+n}, v{XF+n}')
    ln_stats(a, extra_scale=128 ** -0.5 * math.log2(math.e))
    QF = XF
    for r in range(0, 64, 2):
        for k in range(2):
            e(f'v_accvgpr_read_b32 v{12+k}, a{QA_+r+k}\nv_accvgpr_read_b32 v10, a{QW+r+k}\nv_mul_f32 v10, v{ST0}, v10\nv_fma_f32 v{12+k}, v{12+k}, v{ST1}, -v10')
        e(f'v_cvt_pk_bf16_f32 v{QF+r//2}, v12, v13')
    e(f's_and_b32 s{sTmp}, s{sSeg}, 1\ns_lshl_b32 s{sT3}, s{sH}, 1\ns_add_u32 s{sT3}, s{sT3}, s{sTmp}\ns_lshl_b32 s{sT3}, s{sT3}, 7\ns_add_u32 s{sT3}, s{sT3}, {FLAGS + F_KV*128}\ns_lshr_b32 s{sNeed}, s{sSeg}, 1\ns_add_u32 s{sNeed}, s{sNeed}, 1')
    wait_flag(a, abort, sT3, sNeed, 10)
    e(f's_lshl_b32 s{sXoff}, s{sSeg}, 18\ns_lshl_b32 s{sTmp}, s{sH}, 13\ns_add_u32 s{sXoff}, s{sXoff}, s{sTmp}')
    KR, VR, KMR, VMR, OA = 160, 192, 224, 64, 0
    a.reset_q()
    for base, reg, tg in ((KX, KR, 'k'), (VX, VR, 'v')):
        for c in range(8):
            if c % 4 == 0: e(f's_add_u32 s{sT4}, s{sXoff}, {base + c*1024}')
            e(f'buffer_load_dwordx4 v[{reg+4*c}:{reg+4*c+3}], v{L16}, {W}, s{sT4} offen offset:{(c%4)*1024} sc1', tag=(tg, c))
    for c in range(8):
        a.wait_vm(('k', c))
        mf32(a, vr(S, 16), vr(KR + 4 * c, 4), vr(QF + 4 * c, 4), vr(BI, 16) if c == 0 else vr(S, 16))
    e(f's_lshl_b32 s{sT3}, s{sH}, 7\ns_add_u32 s{sT3}, s{sT3}, {FLAGS + F_KM*128}\ns_add_u32 s{sNeed}, s{sSeg}, 1')
    wait_flag(a, abort, sT3, sNeed, 10, sleep=2)
    e(f's_lshr_b32 s{sT3}, s{sXoff}, 2\ns_add_u32 s{sT4}, s{sT3}, {KM}\ns_add_u32 s{sT3}, s{sT3}, {VM}')
    a.reset_q()
    for c in range(8): e(f'buffer_load_dwordx4 v[{KMR+4*c}:{KMR+4*c+3}], v7, {W}, s{sT4} offen offset:{c*256} sc1', tag=('km', c))
    for T in range(4):
        e(f'buffer_load_dwordx2 v[{VMR+4*T}:{VMR+4*T+1}], v8, {W}, s{sT3} offen offset:{T*512} sc1\nv_mov_b64 v[{VMR+4*T+2}:{VMR+4*T+3}], 0')
    for c in range(8):
        a.wait_vm(('km', c))
        mf32(a, vr(SMm, 16), vr(KMR + 4 * c, 4), vr(QF + 4 * c, 4), '0' if c == 0 else vr(SMm, 16))
    vals = [S + r for r in range(16)] + [SMm + r for r in range(4)]
    e(f'v_max3_f32 v10, v{vals[0]}, v{vals[1]}, v{vals[2]}')
    for k in range(3, 19, 2): e(f'v_max3_f32 v10, v10, v{vals[k]}, v{vals[k+1]}')
    e(f'v_max_f32 v10, v10, v{vals[19]}\nv_mov_b32 v11, v10\nv_permlane32_swap_b32 v10, v11\nv_max_f32 v10, v10, v11')
    for r in vals: e(f'v_sub_f32 v{r}, v{r}, v10\nv_exp_f32 v{r}, v{r}')
    PX, PM = 48, 56
    pack(a, S, PX, 16); pack(a, SMm, PM, 4)
    e(f'v_mov_b64 v[{PM+2}:{PM+3}], 0\ns_waitcnt vmcnt(0)')
    LS = S
    mf32(a, vr(LS, 16), vr(ONE4, 4), vr(PX, 4), '0'); mf32(a, vr(LS, 16), vr(ONE4, 4), vr(PX + 4, 4), vr(LS, 16)); mf32(a, vr(LS, 16), vr(ONE4, 4), vr(PM, 4), vr(LS, 16))
    for T in range(4):
        D = ar(OA + 16 * T, 16)
        mf32(a, D, vr(VR + 8 * T, 4), vr(PX, 4), '0'); mf32(a, D, vr(VR + 8 * T + 4, 4), vr(PX + 4, 4), D); mf32(a, D, vr(VMR + 4 * T, 4), vr(PM, 4), D)
    e(f'v_rcp_f32 v11, v{LS}')
    e(f's_add_u32 s{sT3}, s{sXoff}, {OX}\ns_add_u32 s{sT4}, s{sT3}, 4096')
    for c in range(8):
        for i in range(4):
            r = OA + 8 * c + 2 * i
            e(f'v_accvgpr_read_b32 v12, a{r}\nv_accvgpr_read_b32 v13, a{r+1}\nv_mul_f32 v12, v12, v11\nv_mul_f32 v13, v13, v11\nv_cvt_pk_bf16_f32 v{KR+4*c+i}, v12, v13')
        e(f'buffer_store_dwordx4 v[{KR+4*c}:{KR+4*c+3}], v{L16}, {W}, s{sT3 if c < 4 else sT4} offen offset:{(c%4)*1024} sc1')
    e(f's_lshl_b32 s{sT3}, s{sSeg}, 7\ns_add_u32 s{sT3}, s{sT3}, {FLAGS + F_O*128}')
    signal_add(a, sT3, 10, wg=False)
    e(f's_add_u32 s{sSeg}, s{sSeg}, {4*nrep}\ns_branch {top}\n{done}:')
```

```python
import sys
from asmlib import *
from layout import *
import chain as C, workers as Wk
from chain import srd, WS, sH, sWv, sTmp, sTmp2, sPoll
from workers import sRep, sSeg, sStride, sT3, sT4, SB

NAME = 'interleave_layers__linear_attn_block__memory_aug_recurrent_mem_tr__prompt_kernel'
sGrp, sTk, sPassIdx = 62, 63, 64
N_A2REP, N_WOREP, R1 = 4, 6, 22

def build(name=NAME, chain_kw=None, timing=False):
    a = Asm(); e = a.e
    a.raw(f'''; Fused persistent kernel: one workgroup per CU, roles handed out at run time (see gen/ for the generator).
; @launch grid=(256,1,1) block=(256,1,1) lds=163840
.amdgcn_target "amdgcn-amd-amdhsa--gfx950"
.text
.globl {name}
.p2align 8
.type {name},@function
{name}:''')
    e('s_cmp_ge_u32 s2, 256\ns_cbranch_scc1 L_end')
    if timing: e('s_memrealtime s[96:97]')
    e(f'v_lshrrev_b32 v1, 6, v0\nv_readfirstlane_b32 s{sWv}, v1\nv_and_b32 v0, 63, v0')
    srd(a, WS, KA_WS, WS_SIZE)
    srd(a, SB, KA_DBG, 256)
    D = f's[{SB}:{SB+3}]'
    e(f's_getreg_b32 s{sGrp}, hwreg(HW_REG_XCC_ID)\ns_and_b32 s{sGrp}, s{sGrp}, 7\ns_lshl_b32 s{sTmp}, s{sGrp}, 2')
    e(f'v_mov_b32 v1, 1\nv_mov_b32 v2, 1\nv_mov_b32 v3, 0\ns_cmp_lg_u32 s{sWv}, 0\ns_cbranch_scc1 L_tk')
    e(f's_mov_b64 exec, 1\nbuffer_atomic_add v1, off, {D}, s{sTmp} offset:{D_TICK*4} sc0 sc1\ns_waitcnt vmcnt(0)\nbuffer_atomic_add v2, off, {D}, 0 offset:{D_ARR*4} sc1\nds_write_b32 v3, v1\ns_mov_b64 exec, -1\ns_waitcnt lgkmcnt(0)')
    e(f'L_tk:\ns_barrier\nds_read_b32 v1, v3\ns_waitcnt lgkmcnt(0)\nv_readfirstlane_b32 s{sTk}, v1\ns_barrier')
    e(f's_cmp_lt_u32 s{sTk}, 32\ns_cbranch_scc1 L_slot')
    e(f's_mov_b32 s{sPoll}, 0\nL_ov:\nbuffer_load_dword v1, off, {D}, 0 offset:{D_ARR*4} sc1\ns_waitcnt vmcnt(0)\nv_readfirstlane_b32 s{sTmp}, v1\ns_cmp_ge_u32 s{sTmp}, 256\ns_cbranch_scc1 L_ov2')
    e(f's_sleep 4\ns_add_u32 s{sPoll}, s{sPoll}, 1\ns_cmp_lt_u32 s{sPoll}, 0x40000\ns_cbranch_scc1 L_ov\ns_branch L_end')
    e(f'L_ov2:\nv_mov_b32 v1, 1\ns_cmp_lg_u32 s{sWv}, 0\ns_cbranch_scc1 L_ov3')
    e(f's_mov_b64 exec, 1\nbuffer_atomic_add v1, off, {D}, 0 offset:{D_OVF*4} sc0 sc1\ns_waitcnt vmcnt(0)\nds_write_b32 v3, v1\ns_mov_b64 exec, -1\ns_waitcnt lgkmcnt(0)')
    e(f'L_ov3:\ns_barrier\nds_read_b32 v1, v3\nv_lshlrev_b32 v4, 2, v0\nbuffer_load_dword v2, v4, {D}, 0 offen offset:{D_TICK*4} sc1\ns_waitcnt vmcnt(0) lgkmcnt(0)\nv_readfirstlane_b32 s{sT3}, v1\ns_barrier')
    for x in range(8):
        e(f'v_readlane_b32 s{sTmp}, v2, {x}\ns_min_u32 s{sTmp}, s{sTmp}, 32\ns_add_u32 s{sTk}, s{sTmp}, s{sT3}\ns_mov_b32 s{sGrp}, {x}\ns_cmp_lt_u32 s{sTk}, 32\ns_cbranch_scc1 L_slot\ns_sub_u32 s{sT3}, s{sTk}, 32')
    e('s_branch L_end')
    e('L_slot:')
    e(f's_mov_b32 s{sH}, s{sTk}\ns_mov_b32 s{sRep}, 0')
    e(f's_cmp_eq_u32 s{sGrp}, 0\ns_cbranch_scc1 L_chain\ns_cmp_lt_u32 s{sGrp}, 3\ns_cbranch_scc1 L_kv\ns_cmp_lg_u32 s{sGrp}, 4\ns_cbranch_scc1 L_p1')
    e(f's_mov_b32 s{sPassIdx}, s{sTk}\ns_cmp_lt_u32 s{sTk}, 12\ns_cbranch_scc1 L_a1\ns_cmp_lt_u32 s{sTk}, 28\ns_cbranch_scc1 L_a2')
    e(f's_sub_u32 s{sTmp}, s{sTk}, 28\ns_lshl_b32 s{sTmp}, s{sTmp}, 2\ns_add_u32 s{sTmp}, s{sTmp}, s{sWv}\ns_lshl_b32 s{sT3}, s{sTmp}, 12\ns_lshl_b32 s{sT4}, s{sTmp}, 13\ns_add_u32 s{sT4}, s{sT4}, {KVZ}')
    e('v_lshlrev_b32 v1, 4, v0\nv_mov_b64 v[4:5], 0\nv_mov_b64 v[6:7], 0')
    for i in range(4): e(f'buffer_store_dwordx4 v[4:7], v1, s[{WS}:{WS+3}], s{sT3} offen offset:{i*1024} sc1')
    for i in range(8):
        if i == 4: e(f's_add_u32 s{sT4}, s{sT4}, 4096')
        e(f'buffer_store_dwordx4 v[4:7], v1, s[{WS}:{WS+3}], s{sT4} offen offset:{(i%4)*1024} sc1')
    e(f's_waitcnt vmcnt(0)\ns_barrier\ns_cmp_lg_u32 s{sWv}, 0\ns_cbranch_scc1 L_end\nv_mov_b32 v1, 1\ns_mov_b64 exec, 1\nbuffer_atomic_add v1, off, {D}, 0 offset:{D_INIT*4} sc1\ns_branch L_end')
    e(f'L_p1:\ns_sub_u32 s{sTmp}, s{sGrp}, 4\ns_cmp_eq_u32 s{sGrp}, 3\ns_cselect_b32 s{sTmp}, 0, s{sTmp}\ns_lshl_b32 s{sTmp}, s{sTmp}, 5\ns_add_u32 s{sPassIdx}, s{sTmp}, s{sTk}\ns_add_u32 s{sPassIdx}, s{sPassIdx}, 12')
    e(f's_cmp_ge_u32 s{sPassIdx}, {6*R1}\ns_cbranch_scc1 L_after1')
    e(f'L_a1:\ns_mul_hi_u32 s{sSeg}, s{sPassIdx}, {(1 << 32) // 6 + 1}\ns_mul_i32 s{sTmp}, s{sSeg}, 6\ns_sub_u32 s{sH}, s{sPassIdx}, s{sTmp}\ns_mov_b32 s{sRep}, s{sSeg}')
    Wk.a1_weights(a, 'L_end')
    e(f's_mov_b32 s{sSeg}, s{sRep}\ns_mov_b32 s{sStride}, {R1}')
    Wk.a1_pass(a, 'L_end', 0)
    e(f's_cmp_lg_u32 s{sGrp}, 4\ns_cbranch_scc1 L_after1')
    e(f's_mov_b32 s{sSeg}, s{sRep}\ns_mov_b32 s{sStride}, 2')
    Wk.a1_pass(a, 'L_end', 1)
    e('s_branch L_end')
    e(f'L_after1:\ns_barrier\ns_mov_b32 s{sH}, s{sTk}\ns_mov_b32 s{sRep}, 0\ns_cmp_eq_u32 s{sGrp}, 3\ns_cbranch_scc1 L_qa')
    e(f's_and_b32 s{sH}, s{sTk}, 15\ns_lshr_b32 s{sRep}, s{sTk}, 4\ns_sub_u32 s{sTmp}, s{sGrp}, 5\ns_lshl_b32 s{sTmp}, s{sTmp}, 1\ns_add_u32 s{sRep}, s{sRep}, s{sTmp}')
    Wk.wo_role(a, 'L_end', N_WOREP)
    e('s_branch L_end')
    e('L_qa:')
    Wk.qa_role(a, 'L_end')
    e('s_branch L_end')
    e(f'L_a2:\ns_sub_u32 s{sTmp}, s{sTk}, 12\ns_and_b32 s{sH}, s{sTmp}, 3\ns_lshr_b32 s{sRep}, s{sTmp}, 2')
    Wk.a2_role(a, 'L_end', N_A2REP, (6 * R1, 12))
    e('s_branch L_end')
    e(f'L_kv:\ns_sub_u32 s{sRep}, s{sGrp}, 1')
    Wk.kv_role(a, 'L_end')
    e('s_branch L_end')
    e('L_chain:')
    C.chain_role(a, pre_start=lambda ab: Wk.wait_init(a, ab, C.T1), **(chain_kw or dict(any=1, pn=2)))
    e('L_end:')
    e('s_endpgm')
    a.raw(f'''.section .rodata,"a"
.p2align 6
.amdhsa_kernel {name}
  .amdhsa_next_free_vgpr 512
  .amdhsa_next_free_sgpr 102
  .amdhsa_accum_offset 256
  .amdhsa_group_segment_fixed_size 0
  .amdhsa_kernarg_size 104
  .amdhsa_user_sgpr_count 2
  .amdhsa_user_sgpr_kernarg_segment_ptr 1
  .amdhsa_system_sgpr_workgroup_id_x 1
.end_amdhsa_kernel''')
    return a.text()

if __name__ == '__main__':
    out = sys.argv[1] if len(sys.argv) > 1 else 'cdna_kernels/' + NAME[:-7] + '.s'
    t = build()
    open(out, 'w').write(t)
    print('wrote', out, len(t), 'bytes', t.count('\n'), 'lines')
```
